```python
import torch

def _softmax(x, axis=-1):
    return torch.softmax(x, dim=axis)

def _gelu(x):
    return torch.nn.functional.gelu(x, approximate='tanh')

def _silu(x):
    return torch.nn.functional.silu(x)

def _sigmoid(x):
    return torch.sigmoid(x)

def _layernorm(x, axis=-1, eps=1e-05):
    m = x.mean(dim=axis, keepdim=True)
    v = x.var(dim=axis, keepdim=True, unbiased=False)
    return (x - m) / torch.sqrt(v + eps)

def _scatter_add(tgt, idx, src, axis=0):
    return tgt.clone().index_add_(axis, idx, src)

def _segment_sum(src, seg, n):
    out = torch.zeros((n,) + src.shape[1:], dtype=src.dtype)
    return out.index_add_(0, seg, src)

def _pad(x, pw):
    flat = tuple((v for pair in reversed(pw) for v in pair))
    return torch.nn.functional.pad(x, flat)
kernel_name = 'adaLN_cond__compressed_kv_cla__moe_arch_mod__prompt'

def setup_inputs():

    _w = lambda a: (lambda t: t.to(torch.bfloat16) if t.is_floating_point() else t)(torch.as_tensor(a))

    def _A_setup():
        B, H, Sq, Sk, D, M = (1, 32, 2048, 2048, 128, 640)
        Dc = 4 * D
        return {'x': _w((lambda *s: torch.randn(*s, dtype=torch.bfloat16) * 0.1)(B, Sq, M)), 'c_kv': _w((lambda *s: torch.randn(*s, dtype=torch.bfloat16) * 1.6)(B, Sk, Dc)), 'w_q': _w((lambda *s: torch.randn(*s, dtype=torch.bfloat16) * 0.8)(M, H, D) * M ** (-0.5)), 'w_uk': _w((lambda *s: torch.randn(*s, dtype=torch.bfloat16) * 0.8)(Dc, H, D) * Dc ** (-0.5)), 'w_uv': _w((lambda *s: torch.randn(*s, dtype=torch.bfloat16) * 1.6)(Dc, H, D) * Dc ** (-0.5)), 'w_o': _w((lambda *s: torch.randn(*s, dtype=torch.bfloat16) * 1.6)(H, D, M) * (H * D) ** (-0.5))}
    _A_in = _A_setup()

    def _B_setup():
        B, S, D, F, C = (1, 2048, 640, 1728, 8)
        return {'x': _w((lambda *s: torch.randn(*s, dtype=torch.bfloat16) * 0.1)(B, S, D)), 'w_r': _w((lambda *s: torch.randn(*s, dtype=torch.bfloat16) * 0.1)(D)), 'w_gate': _w((lambda *s: torch.randn(*s, dtype=torch.bfloat16) * 0.1)(D, F)), 'w_up': _w((lambda *s: torch.randn(*s, dtype=torch.bfloat16) * 0.1)(D, F)), 'w_down': _w((lambda *s: torch.randn(*s, dtype=torch.bfloat16) * 0.1)(F, D))}
    _B_in = _B_setup()
    return {'A_x': _A_in['x'], 'A_c_kv': _A_in['c_kv'], 'A_w_q': _A_in['w_q'], 'A_w_uk': _A_in['w_uk'], 'A_w_uv': _A_in['w_uv'], 'A_w_o': _A_in['w_o'], 'B_x': _B_in['x'], 'B_w_r': _B_in['w_r'], 'B_w_gate': _B_in['w_gate'], 'B_w_up': _B_in['w_up'], 'B_w_down': _B_in['w_down'], 'c': _w((lambda *s: torch.randn(*s, dtype=torch.bfloat16) * 0.2)(1, 640) * 8.0), 'w_mod': _w((lambda *s: torch.randn(*s, dtype=torch.bfloat16) * 0.2)(640, 6 * 640) * 640 ** (-0.5) * 8.0)}

def reference(A_x, A_c_kv, A_w_q, A_w_uk, A_w_uv, A_w_o, B_x, B_w_r, B_w_gate, B_w_up, B_w_down, c, w_mod):

    def _A_ref(x, c_kv, w_q, w_uk, w_uv, w_o):
        B, Sq, M = (x.shape[0], x.shape[1], x.shape[2])
        Sk = c_kv.shape[1]
        H, D = (w_q.shape[1], w_q.shape[2])
        q = torch.einsum('bqm,mhd->bhqd', x, w_q)
        k = torch.einsum('bkc,chd->bhkd', c_kv, w_uk)
        v = torch.einsum('bkc,chd->bhkd', c_kv, w_uv)
        scores = torch.einsum('bhqd,bhkd->bhqk', q, k) * D ** (-0.5)
        off = Sk - Sq
        qi = torch.arange(Sq)[:, None]
        kj = torch.arange(Sk)[None, :]
        cmask = kj <= qi + off
        scores = torch.where(cmask[None, None], scores, -1000000000.0)
        p = _softmax(scores, axis=-1)
        ctx = torch.einsum('bhqk,bhkd->bhqd', p, v)
        return torch.einsum('bhqd,hdm->bqm', ctx, w_o)

    def _B_ref(x, w_r, w_gate, w_up, w_down):
        B, S, D = x.shape
        C = 8
        r = x @ w_r
        idx = torch.argsort(-r, axis=-1)[:, :C]
        idx_e = (lambda x, n, axis: torch.repeat_interleave(x, n, dim=axis))(idx.reshape(B, C, 1), D, axis=2)
        x_sel = (lambda x, i, axis: torch.take_along_dim(x, i, dim=axis))(x, idx_e, axis=1)
        g = _silu(x_sel @ w_gate)
        u = x_sel @ w_up
        y = g * u @ w_down
        r_sel = _sigmoid((lambda x, i, axis: torch.take_along_dim(x, i, dim=axis))(r, idx, axis=1))
        y = y * r_sel.reshape(B, C, 1)
        b_off = (torch.arange(B) * S).reshape(B, 1)
        flat_idx = (idx + b_off).reshape(B * C)
        zero = (x * 0.0).reshape(B * S, D)
        upd = _scatter_add(zero, flat_idx, y.reshape(B * C, D), axis=0)
        return x + upd.reshape(B, S, D)
    x = A_x
    mod = (_silu(c) @ w_mod).reshape(c.shape[0], 6, 1, -1)
    sa, ca, ga, sb, cb, gb = (mod[:, 0].clone(), mod[:, 1].clone(), mod[:, 2].clone(), mod[:, 3].clone(), mod[:, 4].clone(), mod[:, 5].clone())
    h = _layernorm(x, axis=-1) * (1 + ca) + sa
    x = x + ga * _A_ref(h, A_c_kv, A_w_q, A_w_uk, A_w_uv, A_w_o)
    h = _layernorm(x, axis=-1) * (1 + cb) + sb
    x = x + gb * _B_ref(h, B_w_r, B_w_gate, B_w_up, B_w_down)
    return x
```

```python
import re

REG_RE = re.compile(r'\b([vas])\[(\d+):(\d+)\]|\b([vas])(\d+)\b|\b(vcc|exec|m0|scc)\b')

TRANS = ('v_exp_f32', 'v_log_f32', 'v_rcp_f32', 'v_rsq_f32', 'v_sqrt_f32', 'v_sin_f32', 'v_cos_f32',
         'v_rcp_iflag_f32')


def regs_of(op):
    out = []
    for m in REG_RE.finditer(op):
        if m.group(1):
            out += [(m.group(1), i) for i in range(int(m.group(2)), int(m.group(3)) + 1)]
        elif m.group(4):
            out.append((m.group(4), int(m.group(5))))
        else:
            n = m.group(6)
            if n == 'vcc':
                out += [('s', 106), ('s', 107)]
            elif n == 'exec':
                out += [('s', 126), ('s', 127)]
            elif n == 'm0':
                out.append(('s', 124))
    return out


def split_ops(s):
    ops, depth, cur = [], 0, ''
    for ch in s:
        if ch == '[':
            depth += 1
        elif ch == ']':
            depth -= 1
        if ch == ',' and depth == 0:
            ops.append(cur.strip())
            cur = ''
        else:
            cur += ch
    if cur.strip():
        ops.append(cur.strip())
    return ops


class Ins:
    __slots__ = ('text', 'mn', 'kind', 'wr', 'rd', 'a', 'b', 'c', 'passes', 'dpp', 'target', 'nopn',
                 'label', 'wide', 'lds', 'data')

    def __init__(self, text):
        self.text = text
        self.label = None
        t = text.split(';')[0].strip()
        self.wr, self.rd = set(), set()
        self.a = self.b = self.c = set()
        self.passes = 0
        self.dpp = False
        self.target = None
        self.nopn = 1
        self.wide = False
        self.lds = False
        self.data = set()
        if t.endswith(':'):
            self.kind = 'label'
            self.mn = ''
            self.label = t[:-1]
            self.nopn = 0
            return
        if not t or t.startswith('.'):
            self.kind = 'none'
            self.mn = ''
            self.nopn = 0
            return
        parts = t.split(None, 1)
        mn = parts[0]
        self.mn = mn
        rest = parts[1] if len(parts) > 1 else ''
        ops = split_ops(rest)
        R = lambda i: set(regs_of(ops[i])) if i < len(ops) else set()
        if mn.startswith('v_mfma'):
            self.kind = 'mfma'
            self.wr = R(0)
            self.a, self.b, self.c = R(1), R(2), R(3)
            self.rd = self.a | self.b | self.c
            self.passes = 8 if '32x32' in mn else 4
        elif mn.startswith('v_'):
            self.kind = 'trans' if mn.replace('_e32', '').replace('_e64', '') in TRANS else 'valu'
            self.dpp = ('row_' in rest or 'quad_perm' in rest or 'wave_' in rest or '_dpp' in mn)
            if mn.startswith('v_permlane') and 'swap' in mn or mn.startswith('v_swap'):
                self.wr = R(0) | R(1)
                self.rd = R(0) | R(1)
                self.dpp = True
            elif mn.startswith(('v_add_co', 'v_sub_co', 'v_addc_co', 'v_subb_co', 'v_subrev_co')) or mn.startswith('v_div_scale') or mn.startswith('v_mad_u64'):
                self.wr = R(0) | R(1)
                for i in range(2, len(ops)):
                    self.rd |= R(i)
            else:
                self.wr = R(0)
                for i in range(1, len(ops)):
                    self.rd |= R(i)
                if mn.startswith(('v_fmac', 'v_mac', 'v_dot2c', 'v_pk_fmac', 'v_dot4c')) or self.dpp:
                    self.rd |= R(0)
                if mn.startswith('v_cndmask') and len(ops) == 3:
                    self.rd |= {('s', 106), ('s', 107)}
                if mn.startswith('v_cmpx'):
                    self.wr |= {('s', 126), ('s', 127)}
                if mn.startswith('v_writelane'):
                    self.rd |= R(0)
        elif mn.startswith('ds_'):
            self.kind = 'ds'
            if mn.startswith(('ds_read', 'ds_bpermute', 'ds_permute', 'ds_swizzle')) or '_rtn' in mn:
                self.wr = R(0)
                for i in range(1, len(ops)):
                    self.rd |= R(i)
            else:
                for i in range(len(ops)):
                    self.rd |= R(i)
                for i in range(1, len(ops)):
                    self.data |= R(i)
                self.wide = ('b128' in mn or 'b96' in mn or 'write2_b64' in mn)
        elif mn.startswith(('buffer_', 'global_', 'flat_')):
            self.kind = 'vmem'
            toks = rest.replace(',', ' ').split()
            self.lds = 'lds' in toks
            if mn in ('buffer_wbl2', 'buffer_inv'):
                pass
            elif 'load' in mn and not self.lds:
                self.wr = R(0)
                for i in range(1, len(ops)):
                    self.rd |= R(i)
            elif 'load' in mn:
                for i in range(len(ops)):
                    self.rd |= R(i)
                self.rd.add(('s', 124))
            else:
                for i in range(len(ops)):
                    self.rd |= R(i)
                di = 0 if mn.startswith('buffer_') else 1
                if 'atomic' in mn and 'sc0' in toks:
                    if mn.startswith('buffer_'):
                        self.wr = R(0)
                    else:
                        self.wr = R(0)
                        di = 2
                self.data = R(di)
                self.wide = ('x4' in mn or 'x3' in mn)
        elif mn.startswith('s_'):
            self.kind = 'salu'
            if mn == 's_nop':
                self.nopn = int(ops[0], 0) + 1
            elif mn.startswith(('s_cbranch', 's_branch')):
                self.kind = 'branch'
                self.target = ops[0]
            elif mn == 's_endpgm':
                self.kind = 'end'
            elif mn.startswith(('s_waitcnt', 's_barrier', 's_setprio', 's_sleep', 's_sethalt')):
                pass
            elif mn.startswith(('s_cmp', 's_bitcmp')):
                for i in range(len(ops)):
                    self.rd |= R(i)
            elif mn.startswith(('s_load', 's_buffer_load', 's_memtime', 's_memrealtime')):
                self.kind = 'smem'
                self.wr = R(0)
                for i in range(1, len(ops)):
                    self.rd |= R(i)
            else:
                self.wr = R(0)
                for i in range(1, len(ops)):
                    self.rd |= R(i)
                if 'saveexec' in mn:
                    self.wr |= {('s', 126), ('s', 127)}
        else:
            raise ValueError('unknown instruction ' + text)


def vregs(s):
    return {r for r in s if r[0] in 'va'}


def sregs(s):
    return {r for r in s if r[0] == 's'}


def need(p, c):
    n = 0
    pk, ck = p.kind, c.kind
    pvalu = pk in ('valu', 'trans')
    cvalu = ck in ('valu', 'trans')
    if pvalu:
        pw = vregs(p.wr)
        ps = sregs(p.wr)
        if ck == 'mfma' and pw & c.rd:
            n = max(n, 2)
        if pk == 'trans' and (cvalu or ck == 'mfma') and pw & c.rd:
            n = max(n, 1)
        if pk == 'trans' and ck in ('vmem', 'ds') and pw & c.rd:
            n = max(n, 1)
        if cvalu and c.dpp and pw & c.rd:
            n = max(n, 2)
        if cvalu and c.mn.startswith(('v_readfirstlane', 'v_readlane')) and pw & c.rd:
            n = max(n, 1)
        if ps:
            if cvalu and ps & c.rd:
                n = max(n, 4 if c.mn.startswith(('v_readlane', 'v_writelane')) else 2)
            if ck == 'vmem' and ps & c.rd:
                n = max(n, 5)
            if cvalu and c.dpp and (('s', 126) in ps):
                n = max(n, 5)
            if ck in ('salu', 'branch', 'smem') and ps & c.rd:
                n = max(n, 1)
    if pk == 'mfma':
        big = p.passes == 8
        if ck == 'mfma':
            if p.wr & (c.a | c.b):
                n = max(n, 12 if big else 8)
            if p.wr & c.c:
                if not (p.wr == c.c and p.passes == c.passes):
                    n = max(n, 10 if big else 6)
            if p.wr & c.wr and not (p.wr == c.wr):
                n = max(n, 10 if big else 6)
        elif cvalu or ck in ('vmem', 'ds'):
            if p.wr & (c.rd | c.wr):
                n = max(n, 12 if big else 8)
            if cvalu and p.c & c.wr:
                n = max(n, 7 if big else 3)
    if pk in ('vmem', 'ds') and p.wide and cvalu and p.data & c.wr:
        n = max(n, 2)
    if pk == 'salu' and ('s', 124) in p.wr and (ck == 'ds' or (ck == 'vmem' and c.lds)):
        n = max(n, 1)
    return n


MAXW = 12


class Kern:
    def __init__(self, name):
        self.name = name
        self.ins = []
        self.nl = 0

    def __call__(self, text):
        for line in text.split('\n'):
            line = line.strip()
            if line:
                self.ins.append(Ins(line))

    def label(self, name):
        self.ins.append(Ins(name + ':'))

    def newlabel(self, p='L'):
        self.nl += 1
        return f'{self.name}_{p}{self.nl}'

    def fix(self):
        ins = self.ins
        total_nops = 0
        i = 0
        while i < len(ins):
            c = ins[i]
            if c.kind in ('label', 'none'):
                i += 1
                continue
            labels = {}
            for j, x in enumerate(ins):
                if x.kind == 'label':
                    labels[x.label] = j
            break
        i = 0
        while i < len(ins):
            c = ins[i]
            if c.kind in ('label', 'none'):
                i += 1
                continue
            short = self._short(i)
            if short > 0:
                ins.insert(i, Ins(f's_nop {short - 1}'))
                total_nops += short
                i += 1
            i += 1
        return total_nops

    def _srcs(self):
        d = {}
        for j, x in enumerate(self.ins):
            if x.kind == 'branch':
                d.setdefault(x.target, []).append(j)
        return d

    def _short(self, i):
        ins = self.ins
        c = ins[i]
        srcs = self._srcs_cache if hasattr(self, '_srcs_cache') and self._srcs_len == len(ins) else None
        if srcs is None:
            srcs = self._srcs()
            self._srcs_cache = srcs
            self._srcs_len = len(ins)
        worst = 0
        stack = [(i - 1, 0)]
        seen = {}
        while stack:
            j, w = stack.pop()
            while j >= 0 and w < MAXW:
                if seen.get(j, 99) <= w:
                    break
                seen[j] = w
                p = ins[j]
                if p.kind == 'label':
                    for s in srcs.get(p.label, []):
                        stack.append((s, w))
                    j -= 1
                    continue
                if p.kind == 'none':
                    j -= 1
                    continue
                if p.kind == 'end' or (p.kind == 'branch' and p.mn == 's_branch' and False):
                    break
                nd = need(p, c)
                if nd > w:
                    worst = max(worst, nd - w)
                w += p.nopn
                j -= 1
        return worst

    def text(self):
        out = []
        for x in self.ins:
            if x.kind == 'label':
                out.append(x.text)
            else:
                out.append('    ' + x.text)
        return '\n'.join(out)


HEADER_FILE = 'adaLN_cond__compressed_kv_cla__moe_arch_mod__prompt.s.ref'


def build_file(kernels, path):
    hdr = []
    for line in open(HEADER_FILE).read().split('\n'):
        if line.startswith('; @launch'):
            break
        hdr.append(line)
    out = list(hdr)
    for k, grid, block, lds, nv in kernels:
        out.append(f'; @launch kernel={k.name}_kernel grid=({grid},1,1) block=({block},1,1) lds={lds}')
    out.append('.amdgcn_target "amdgcn-amd-amdhsa--gfx950"')
    out.append('.text')
    seen = set()
    for k, grid, block, lds, nv in kernels:
        if k.name in seen:
            continue
        seen.add(k.name)
        n = k.fix()
        out.append(f'.globl {k.name}_kernel')
        out.append('.p2align 8')
        out.append(f'.type {k.name}_kernel,@function')
        out.append(f'{k.name}_kernel:')
        out.append(k.text())
        out.append('    s_endpgm')
    out.append('.section .rodata,"a"')
    seen = set()
    for k, grid, block, lds, nv in kernels:
        if k.name in seen:
            continue
        seen.add(k.name)
        if nv > 256:
            acc = 256
            tot = nv
        else:
            acc = (nv + 3) // 4 * 4
            tot = nv
        out.append('.p2align 6')
        out.append(f'.amdhsa_kernel {k.name}_kernel')
        out.append(f'  .amdhsa_next_free_vgpr {tot}')
        out.append('  .amdhsa_next_free_sgpr 102')
        out.append(f'  .amdhsa_accum_offset {acc}')
        out.append('  .amdhsa_group_segment_fixed_size 0')
        out.append('  .amdhsa_kernarg_size 128')
        out.append('  .amdhsa_user_sgpr_count 2')
        out.append('  .amdhsa_user_sgpr_kernarg_segment_ptr 1')
        out.append('  .amdhsa_system_sgpr_workgroup_id_x 1')
        out.append('.end_amdhsa_kernel')
    open(path, 'w').write('\n'.join(out) + '\n')


ARG = dict(x=0, ckv=8, wq=16, wuk=24, wuv=32, wo=40, bx=48, wr=56, wg=64, wu=72, wd=80, c=88, wmod=96,
           out=104, dbg=112, ws=120)
SIZE = dict(x=2048 * 640 * 2, ckv=2048 * 512 * 2, wq=640 * 4096 * 2, wuk=512 * 4096 * 2, wuv=512 * 4096 * 2,
            wo=4096 * 640 * 2, wr=1280, wg=640 * 1728 * 2, wu=640 * 1728 * 2, wd=1728 * 640 * 2, c=1280,
            wmod=640 * 3840 * 2, out=2048 * 640 * 2, dbg=256, ws=268435456)

WS = dict(
    kv=0,
    ctx=32 << 20,
    h=48 << 20,
    part=52 << 20,
    modp=80 << 20,
    h2=81 << 20,
    x1=84 << 20,
    r=87 << 20,
    moe=88 << 20,
)


def srd(k, d, base, nbytes, off=0):
    if off:
        k(f's_add_u32 s{d}, s{base}, {off}')
        k(f's_addc_u32 s{d+1}, s{base+1}, 0')
    else:
        k(f's_mov_b32 s{d}, s{base}')
        k(f's_mov_b32 s{d+1}, s{base+1}')
    k(f's_mov_b32 s{d+2}, {nbytes}')
    k(f's_mov_b32 s{d+3}, 0x00020000')


PROF = False
PROF_WS = 200 << 20


def tstamp(k, idx):
    if not PROF:
        return
    k(f's_memtime s[{70+2*idx}:{71+2*idx}]')


def tdump(k, n, wsbase, kid, waves_shift=3):
    if not PROF:
        return
    k('s_waitcnt vmcnt(0) lgkmcnt(0)')
    k(f's_memtime s[{70+2*n}:{71+2*n}]')
    k('s_memrealtime s[60:61]')
    k('s_waitcnt lgkmcnt(0)')
    k(f's_add_u32 s64, s{wsbase}, {PROF_WS + kid * (1 << 20)}')
    k(f's_addc_u32 s65, s{wsbase+1}, 0')
    k('s_mov_b32 s66, 0x100000')
    k('s_mov_b32 s67, 0x00020000')
    k(f's_lshl_b32 s62, s2, {waves_shift}')
    k('s_add_u32 s62, s62, s22')
    k('s_lshl_b32 s62, s62, 6')
    k('v_mov_b32 v0, 0')
    for i in range(n + 1):
        k(f'v_mov_b32 v1, s{70+2*i}')
        k(f'buffer_store_dword v1, v0, s[64:67], s62 offen offset:{4*i}')
    k('v_mov_b32 v1, s60')
    k(f'buffer_store_dword v1, v0, s[64:67], s62 offen offset:60')
    k('v_mov_b32 v1, s68')
    k(f'buffer_store_dword v1, v0, s[64:67], s62 offen offset:56')


def tstart(k):
    if not PROF:
        return
    k('s_memrealtime s[68:69]')
    k('s_memtime s[70:71]')
```

```python
from asmgen import *
import asmgen
import math

O0 = 192
S0 = 160
Q0 = 128
P0 = 112
R0 = 80
NM = 72
T0 = 56
STASH = 131072
V_LANE16 = 18
V_KADDR = 20
V_VADDR = 21
V_L = 22
V_TS = 24
V_MD = 26
V_NEG = 27
ONES = 40
LA = 44
OPT = dict(prio=1, lsum='mfma')
BIAS = 60.0
QSCALE = math.log2(math.e) / math.sqrt(128.0)


def f32hex(x):
    import struct
    return hex(struct.unpack('<I', struct.pack('<f', x))[0])


def vr(b, n=4):
    return f'v[{b}:{b+n-1}]'


def Or(db, qb): return O0 + (db * 2 + qb) * 4
def Sr(kvb, qb): return S0 + (kvb * 2 + qb) * 4
def Qr(ks, qb): return Q0 + (ks * 2 + qb) * 4
def Pr(u, qb): return P0 + (u * 2 + qb) * 4


def qproj(k):
    k('v_lshrrev_b32 v1, 4, v0')
    k('v_and_b32 v2, 15, v0')
    k('v_lshlrev_b32 v3, 1, v1')
    k('v_xor_b32 v2, v2, v3')
    k('s_lshl_b32 s25, s22, 2')
    k('s_and_b32 s25, s25, 8')
    k('v_xor_b32 v2, s25, v2')
    k('v_lshlrev_b32 v1, 13, v1')
    k('v_lshl_or_b32 v4, v2, 4, v1')
    k('v_lshrrev_b32 v1, 2, v0')
    k('v_and_b32 v1, 3, v1')
    k('v_lshrrev_b32 v2, 4, v0')
    k('v_lshl_add_u32 v3, v2, 3, v1')
    k('v_lshlrev_b32 v3, 8, v3')
    k('v_and_b32 v2, 1, v2')
    k('v_lshl_add_u32 v1, v2, 2, v1')
    k('v_lshlrev_b32 v1, 1, v1')
    k('v_bfe_u32 v2, v0, 1, 1')
    k('v_xor_b32 v2, v2, v1')
    k('v_lshl_add_u32 v3, v2, 4, v3')
    k('v_and_b32 v1, 1, v0')
    k('v_lshl_add_u32 v8, v1, 3, v3')
    for db in range(1, 8):
        k(f'v_xor_b32 v{8+db}, {db*32}, v8')
    for db in range(8):
        k(f'v_add_u32 v{32+db}, 0xc000, v{8+db}')
    k('s_lshl_b32 s40, s22, 15')
    k('s_lshl_b32 s25, s26, 8')
    k('s_add_u32 s40, s40, s25')
    k('s_lshl_b32 s42, s22, 10')
    k('s_lshl_b32 s41, s27, 3')
    k('s_lshl_b32 s25, s24, 1')
    k('s_add_u32 s41, s41, s25')
    k('s_mul_i32 s41, s41, 20480')
    k('s_add_u32 s43, s41, 20480')

    issued = []
    NR = 6

    def dma(st):
        out = []
        for q in range(2):
            ks = 2 * st + q
            out.append([f's_add_u32 m0, s42, {(st % NR) * 16384 + q * 8192}',
                        f's_add_u32 s44, s40, {ks * 32 * 8192}',
                        'buffer_load_dwordx4 v4, s[28:31], s44 offen lds'])
            issued.append(('w', st))
        return out

    def hload(ks):
        out = []
        for qb in range(2):
            r = R0 + ((ks % 4) * 2 + qb) * 4
            so = 41 if qb == 0 else 43
            out.append([f's_add_u32 s45, s{so}, {ks * 1024}',
                        f'buffer_load_dwordx4 {vr(r)}, v{V_LANE16}, s[32:35], s45 offen'])
            issued.append(('h', ks))
        return out

    def emit(lst):
        for g in lst:
            for x in g:
                k(x)

    def wait(pred):
        last = -1
        for idx, t in enumerate(issued):
            if pred(t):
                last = idx
        k(f's_waitcnt vmcnt({len(issued) - 1 - last})')

    WFS = [128, 160]

    def wreads(ks):
        st = ks // 2
        slot = st % NR
        base = 8 if slot < 3 else 32
        off0 = (slot % 3) * 16384 + (ks & 1) * 8192
        out = []
        for db in range(8):
            for t in range(2):
                r = WFS[ks & 1] + 4 * db + 2 * t
                out.append(f'ds_read_b64_tr_b16 v[{r}:{r+1}], v{base+db} offset:{off0 + t*1024}')
        return out

    emit(dma(0)); emit(hload(0)); emit(hload(1)); emit(dma(1)); emit(hload(2))
    emit(dma(2)); emit(dma(3)); emit(dma(4))
    wait(lambda t: t == ('w', 0))
    k('s_barrier')
    for r in wreads(0):
        k(r)
    for ks in range(20):
        st = ks // 2
        wait(lambda t: t[0] == 'h' and t[1] <= ks)
        k('s_waitcnt lgkmcnt(0)')
        ms = []
        for db in range(8):
            for qb in range(2):
                acc = Or(db, qb)
                c = '0' if ks == 0 else vr(acc)
                ms.append(f'v_mfma_f32_16x16x32_bf16 {vr(acc)}, {vr(WFS[ks & 1] + 4*db)}, {vr(R0 + ((ks % 4)*2+qb)*4)}, {c}')
        rs = wreads(ks + 1) if ks + 1 < 20 else []
        extra = []
        pre = []
        if ks & 1 == 0:
            pass
        for i in range(16):
            k(ms[i])
            if ks & 1 == 0 and i == 9 and st + 1 < 10:
                wait(lambda t: t[0] == 'w' and t[1] <= st + 1)
                k('s_barrier')
                if st + 5 < 10:
                    extra += dma(st + 5)
            if i == 1 and ks + 3 < 20:
                extra += hload(ks + 3)
            if rs:
                k(rs.pop(0))
            if extra and i % 2 == 1:
                emit([extra.pop(0)])
        emit(extra)
    k(f's_mov_b32 s25, {f32hex(QSCALE)}')
    for ks in range(4):
        for qb in range(2):
            a0, a1 = Or(2 * ks, qb), Or(2 * ks + 1, qb)
            for a in (a0, a1):
                for r in range(4):
                    k(f'v_mul_f32 v{a+r}, s25, v{a+r}')
            q = Qr(ks, qb)
            k(f'v_cvt_pk_bf16_f32 v{q}, v{a0}, v{a0+1}')
            k(f'v_cvt_pk_bf16_f32 v{q+1}, v{a0+2}, v{a0+3}')
            k(f'v_cvt_pk_bf16_f32 v{q+2}, v{a1}, v{a1+1}')
            k(f'v_cvt_pk_bf16_f32 v{q+3}, v{a1+2}, v{a1+3}')


def kv_dma(k, isv, joff):
    k(f's_add_u32 s54, s50, {joff}')
    k('s_and_b32 s55, s54, 1')
    k('s_lshl_b32 s55, s55, 15')
    k('s_lshl_b32 s54, s54, 16')
    k('s_add_u32 s54, s54, s52')
    k('s_add_u32 s55, s55, s53')
    if isv:
        k('s_add_u32 s54, s54, 16384')
        k('s_add_u32 m0, s55, 16384')
    else:
        k('s_mov_b32 m0, s55')
    for i in range(4):
        k(f'buffer_load_dwordx4 v{V_LANE16}, s[36:39], s54 offen offset:{i*1024} lds')


def loop_dma_pieces():
    pre = ['s_add_u32 s54, s50, 1',
           's_and_b32 s55, s54, 1',
           's_lshl_b32 s55, s55, 15',
           's_lshl_b32 s54, s54, 16',
           's_add_u32 s54, s54, s52',
           's_add_u32 s55, s55, s53',
           's_add_u32 s56, s54, 16384',
           's_add_u32 s57, s55, 16384',
           's_add_u32 s54, s54, 65536',
           's_xor_b32 s55, s55, 0x8000',
           's_add_u32 s58, s50, 2',
           's_cmp_gt_u32 s58, s27',
           's_cselect_b32 s46, 0, s38']
    ps = []
    for i in range(4):
        ps.append((['s_mov_b32 m0, s57'] if i == 0 else []) +
                  [f'buffer_load_dwordx4 v{V_LANE16}, s[36:39], s56 offen offset:{i*1024} lds'])
    for i in range(4):
        ps.append((['s_mov_b32 m0, s55'] if i == 0 else []) +
                  [f'buffer_load_dwordx4 v{V_LANE16}, s[44:47], s54 offen offset:{i*1024} lds'])
    return pre, ps


def frag_list(pv, qk):
    L = []
    if pv:
        for u in range(2):
            for db in range(8):
                ms = [(Or(db, qb), Pr(u, qb), Or(db, qb)) for qb in range(2)]
                if OPT['lsum'] == 'mfma' and db in (2, 5):
                    qb = 0 if db == 2 else 1
                    ms.append((LA + 4 * qb, Pr(u, qb), LA + 4 * qb))
                L.append((V_VADDR, 16384 + (u * 8 + db) * 1024, ms))
    if qk:
        for ks in range(4):
            for kvb in range(4):
                ms = [(Sr(kvb, qb), Qr(ks, qb), (NM + 4 * qb) if ks == 0 else Sr(kvb, qb)) for qb in range(2)]
                L.append((V_KADDR, (kvb * 4 + ks) * 1024, ms))
    return L


PF = 7


def rd(L, i):
    a, off, _ = L[i]
    r = R0 + (i % 8) * 4
    return f'ds_read_b128 {vr(r)}, v{a} offset:{off}'


def prefetch(k, L):
    for i in range(min(PF, len(L))):
        k(rd(L, i))


def mfma_phase(k, L, tail=None):
    n = len(L)
    eb = OPT.get('eb', 0)
    for i in range(n):
        outstanding = min(n, i + PF) - (i + 1)
        if tail is not None and i == n - eb:
            k('s_setprio 3')
            k('s_waitcnt vmcnt(0) lgkmcnt(0)')
            k('s_barrier')
        elif tail is None or i < n - eb:
            k(f's_waitcnt lgkmcnt({outstanding})')
        r = R0 + (i % 8) * 4
        ms = L[i][2]
        d, b, c = ms[0]
        k(f'v_mfma_f32_16x16x32_bf16 {vr(d)}, {vr(r)}, {vr(b)}, {vr(c)}')
        if i + PF < n:
            k(rd(L, i + PF))
        d, b, c = ms[1]
        k(f'v_mfma_f32_16x16x32_bf16 {vr(d)}, {vr(r)}, {vr(b)}, {vr(c)}')
        if len(ms) > 2:
            d, b, c = ms[2]
            k(f'v_mfma_f32_16x16x32_bf16 {vr(d)}, {vr(ONES)}, {vr(b)}, {vr(c)}')


def softmax(k, masked, dmas):
    lab = k.newlabel('sm')
    rare = k.newlabel('rare')
    done = k.newlabel('smd')
    mf = OPT['lsum'] == 'mfma'
    pieces = []
    if dmas == 'spread':
        pre, pieces = loop_dma_pieces()
        for x in pre:
            k(x)
    else:
        dmas()

    def piece():
        if pieces:
            for x in pieces.pop(0):
                k(x)
    if masked:
        n = 0
        for kvb in range(4):
            for qb in range(2):
                for r in range(4):
                    sp = 56 + 2 * (n % 4)
                    k(f'v_cmp_le_i32 s[{sp}:{sp+1}], {16*kvb + r - 16*qb}, v{V_MD}')
                    n += 1
                for r in range(4):
                    sp = 56 + 2 * r
                    s = Sr(kvb, qb) + r
                    k(f'v_cndmask_b32 v{s}, v{V_NEG}, v{s}, s[{sp}:{sp+1}]')
    k('s_cmp_lg_u32 s51, 0')
    k(f's_cbranch_scc1 {rare}')
    k.label(lab)
    n = 0
    for u in range(2):
        for qb in range(2):
            t = T0 + (n & 1) * 8
            s0, s1 = Sr(2 * u, qb), Sr(2 * u + 1, qb)
            for e in range(8):
                s = (s0 + e) if e < 4 else (s1 + e - 4)
                if e in (0, 5):
                    piece()
                k(f'v_exp_f32 v{t+e}, v{s}')
            ts = V_TS + qb
            p = Pr(u, qb)
            if mf:
                for e in range(0, 8, 2):
                    k(f'v_cvt_pk_bf16_f32 v{p+e//2}, v{t+e}, v{t+e+1}')
                if n == 0:
                    k(f'v_or3_b32 v{V_TS}, v{p}, v{p+1}, v{p+2}')
                    k(f'v_or_b32 v{V_TS}, v{V_TS}, v{p+3}')
                else:
                    k(f'v_or3_b32 v{V_TS}, v{V_TS}, v{p}, v{p+1}')
                    k(f'v_or3_b32 v{V_TS}, v{V_TS}, v{p+2}, v{p+3}')
            else:
                if u == 0:
                    k(f'v_add_f32 v{ts}, v{t}, v{t+1}')
                else:
                    k(f'v_add_f32 v{ts}, v{ts}, v{t}')
                    k(f'v_add_f32 v{ts}, v{ts}, v{t+1}')
                k(f'v_cvt_pk_bf16_f32 v{p}, v{t}, v{t+1}')
                for e in range(2, 8, 2):
                    k(f'v_add_f32 v{ts}, v{ts}, v{t+e}')
                    k(f'v_add_f32 v{ts}, v{ts}, v{t+e+1}')
                    k(f'v_cvt_pk_bf16_f32 v{p+e//2}, v{t+e}, v{t+e+1}')
            n += 1
    if mf:
        k(f'v_and_b32 v{V_TS}, 0x40004000, v{V_TS}')
        k(f'v_cmp_ne_u32 vcc, 0, v{V_TS}')
    else:
        k(f'v_max_f32 v{T0}, v{V_TS}, v{V_TS+1}')
        k(f'v_cmp_lt_f32 vcc, 2.0, v{T0}')
    k(f's_cbranch_vccz {done}')
    k.label(rare)
    for qb in range(2):
        m = T0 + qb
        vals = [Sr(kvb, qb) + r for kvb in range(4) for r in range(4)]
        k(f'v_max3_f32 v{m}, v{vals[0]}, v{vals[1]}, v{vals[2]}')
        for i in range(3, 15, 2):
            k(f'v_max3_f32 v{m}, v{m}, v{vals[i]}, v{vals[i+1]}')
        k(f'v_max_f32 v{m}, v{m}, v{vals[15]}')
    for sw in ('v_permlane32_swap_b32', 'v_permlane16_swap_b32'):
        for qb in range(2):
            k(f'v_mov_b32 v{T0+2+qb}, v{T0+qb}')
        for qb in range(2):
            k(f'{sw} v{T0+qb}, v{T0+2+qb}')
        for qb in range(2):
            k(f'v_max_f32 v{T0+qb}, v{T0+qb}, v{T0+2+qb}')
    for qb in range(2):
        k(f'v_add_f32 v{T0+qb}, s48, v{T0+qb}')
    nf = k.newlabel('nf')
    jn = k.newlabel('jn')
    k('s_cmp_lg_u32 s51, 0')
    k(f's_cbranch_scc0 {nf}')
    for qb in range(2):
        k(f'v_max_f32 v{T0+qb}, s49, v{T0+qb}')
    k(f's_branch {jn}')
    k.label(nf)
    for qb in range(2):
        k(f'v_max_f32 v{T0+qb}, 0, v{T0+qb}')
        k(f'v_exp_f32 v{T0+2+qb}, -v{T0+qb}')
    for qb in range(2):
        if mf:
            for r in range(4):
                k(f'v_mul_f32 v{LA+4*qb+r}, v{LA+4*qb+r}, v{T0+2+qb}')
        else:
            k(f'v_mul_f32 v{V_L+qb}, v{V_L+qb}, v{T0+2+qb}')
        for db in range(8):
            for r in range(4):
                o = Or(db, qb) + r
                k(f'v_mul_f32 v{o}, v{o}, v{T0+2+qb}')
    k.label(jn)
    for qb in range(2):
        for r in range(4):
            k(f'v_sub_f32 v{NM+4*qb+r}, v{NM+4*qb+r}, v{T0+qb}')
        for kvb in range(4):
            for r in range(4):
                s = Sr(kvb, qb) + r
                k(f'v_sub_f32 v{s}, v{s}, v{T0+qb}')
    k('s_mov_b32 s51, 0')
    k(f's_branch {lab}')
    k.label(done)
    if not mf:
        for qb in range(2):
            k(f'v_add_f32 v{V_L+qb}, v{V_L+qb}, v{V_TS+qb}')


def prio(k, v):
    if OPT['prio'] == 1:
        k(f's_setprio {v}')


def attn_block(k, tag):
    for r in range(64):
        k(f'v_mov_b32 v{O0+r}, 0')
    for r in range(8):
        k(f'v_mov_b32 v{NM+r}, 0')
    k(f'v_mov_b32 v{V_L}, 0')
    k(f'v_mov_b32 v{V_L+1}, 0')
    for r in range(8):
        k(f'v_mov_b32 v{LA+r}, 0')
    k('s_mov_b32 s51, 1')
    k('s_mov_b32 s50, 0')
    k('s_lshl_b32 s25, s23, 16')
    k(f'v_add_u32 v{V_KADDR}, s25, v{V_LANE16}')
    k(f'v_mov_b32 v{V_VADDR}, v{V_KADDR}')
    k('s_waitcnt vmcnt(0)')
    k('s_barrier')
    l1 = k.newlabel('a')
    k('s_cmp_lg_u32 s23, 0')
    k(f's_cbranch_scc1 {l1}')
    k('s_barrier')
    k.label(l1)
    L = frag_list(False, True)
    prio(k, 1)
    prefetch(k, L)
    mfma_phase(k, L)
    prio(k, 0)
    k(f'v_xor_b32 v{V_KADDR}, 0x8000, v{V_KADDR}')
    k('s_waitcnt vmcnt(0)')
    k('s_barrier')
    loop = k.newlabel('loop')
    last = k.newlabel('last')
    k('s_cmp_ge_u32 s50, s27')
    k(f's_cbranch_scc1 {last}')
    k.label(loop)

    def dmas():
        if OPT.get('nodma'):
            return
        kv_dma(k, True, 1)
        sk = k.newlabel('sk')
        k('s_add_u32 s54, s50, 2')
        k('s_cmp_gt_u32 s54, s27')
        k(f's_cbranch_scc1 {sk}')
        kv_dma(k, False, 2)
        k.label(sk)
    fs = OPT.get('fine') and tag == 'b1'
    if fs: tstamp(k, 4)
    if OPT.get('nosm'):
        dmas()
    else:
        softmax(k, False, 'spread' if OPT.get('spread', 1) else dmas)
    if fs: tstamp(k, 5)
    L = frag_list(True, True)
    prefetch(k, L)
    if fs: tstamp(k, 6)
    k('s_barrier')
    if fs: tstamp(k, 7)
    prio(k, 1)
    mfma_phase(k, L, tail=1 if OPT.get('eb', 0) else None)
    prio(k, 0)
    if fs: tstamp(k, 8)
    k(f'v_xor_b32 v{V_KADDR}, 0x8000, v{V_KADDR}')
    k(f'v_xor_b32 v{V_VADDR}, 0x8000, v{V_VADDR}')
    k('s_add_u32 s50, s50, 1')
    if not OPT.get('eb', 0):
        k('s_waitcnt vmcnt(0)')
        if fs: tstamp(k, 9)
        k('s_barrier')
        if fs: tstamp(k, 10)
    k('s_cmp_lt_u32 s50, s27')
    k(f's_cbranch_scc1 {loop}')
    k.label(last)
    softmax(k, True, lambda: None)
    L = frag_list(True, False)
    prefetch(k, L)
    k('s_barrier')
    prio(k, 1)
    mfma_phase(k, L)
    prio(k, 0)
    k('s_barrier')
    l2 = k.newlabel('b')
    k('s_cmp_eq_u32 s23, 0')
    k(f's_cbranch_scc1 {l2}')
    k('s_barrier')
    k.label(l2)
    if OPT['lsum'] == 'mfma':
        for qb in range(2):
            k(f'v_mov_b32 v{V_L+qb}, v{LA+4*qb}')
    for sw in (('v_permlane32_swap_b32', 'v_permlane16_swap_b32') if OPT['lsum'] != 'mfma' else ()):
        for qb in range(2):
            k(f'v_mov_b32 v{T0+qb}, v{V_L+qb}')
        for qb in range(2):
            k(f'{sw} v{V_L+qb}, v{T0+qb}')
        for qb in range(2):
            k(f'v_add_f32 v{V_L+qb}, v{V_L+qb}, v{T0+qb}')
    k('s_lshl_b32 s25, s22, 13')
    k(f'v_add_u32 v{T0+4}, s25, v{V_LANE16}')
    k(f'v_xor_b32 v{T0+5}, 0x8000, v{T0+4}')
    k('s_lshl_b32 s25, s22, 10')
    k('s_add_u32 s25, s25, 0x10000')
    k(f'v_add_u32 v{T0+6}, s25, v{V_LANE16}')
    k(f'v_xor_b32 v{T0+7}, 0x1000, v{T0+6}')
    k(f'v_mov_b32 v{T0}, v{NM}')
    k(f'v_mov_b32 v{T0+1}, v{NM+4}')
    k(f'v_mov_b32 v{T0+2}, v{V_L}')
    k(f'v_mov_b32 v{T0+3}, v{V_L+1}')
    k(f'ds_write_b128 v{T0+6}, {vr(T0)}')
    gb = k.newlabel('gb')
    ge = k.newlabel('ge')
    k('s_cmp_lg_u32 s23, 0')
    k(f's_cbranch_scc1 {gb}')
    for grp in range(2):
        if grp == 1:
            k.label(gb)
        keep = range(0, 4) if grp == 0 else range(4, 8)
        send = range(4, 8) if grp == 0 else range(0, 4)
        for i, db in enumerate(send):
            for qb in range(2):
                k(f'ds_write_b128 v{T0+4}, {vr(Or(db, qb))} offset:{(i*2+qb)*1024}')
        k('s_waitcnt lgkmcnt(0)')
        k('s_barrier')
        k(f'ds_read_b128 {vr(T0+8)}, v{T0+7}')
        for i, db in enumerate(keep):
            for qb in range(2):
                k(f'ds_read_b128 {vr(S0 + (i*2+qb)*4)}, v{T0+5} offset:{(i*2+qb)*1024}')
        k('s_waitcnt lgkmcnt(8)')
        for qb in range(2):
            k(f'v_min_f32 v{T0+12+qb}, v{T0+qb}, v{T0+8+qb}')
        for qb in range(2):
            k(f'v_sub_f32 v{T0+qb}, v{T0+12+qb}, v{T0+qb}')
            k(f'v_sub_f32 v{T0+8+qb}, v{T0+12+qb}, v{T0+8+qb}')
        for qb in range(2):
            k(f'v_exp_f32 v{T0+qb}, v{T0+qb}')
            k(f'v_exp_f32 v{T0+8+qb}, v{T0+8+qb}')
        for qb in range(2):
            k(f'v_mul_f32 v{T0+2+qb}, v{T0+2+qb}, v{T0+qb}')
            k(f'v_fma_f32 v{T0+2+qb}, v{T0+10+qb}, v{T0+8+qb}, v{T0+2+qb}')
        for qb in range(2):
            k(f'v_rcp_f32 v{T0+2+qb}, v{T0+2+qb}')
        for qb in range(2):
            k(f'v_mul_f32 v{T0+qb}, v{T0+qb}, v{T0+2+qb}')
            k(f'v_mul_f32 v{T0+8+qb}, v{T0+8+qb}, v{T0+2+qb}')
        k('s_waitcnt lgkmcnt(0)')
        k('s_lshl_b32 s54, s27, 3')
        k('s_lshl_b32 s25, s24, 1')
        k('s_add_u32 s54, s54, s25')
        k('s_lshl_b32 s54, s54, 17')
        k('s_lshl_b32 s25, s26, 12')
        k('s_add_u32 s54, s54, s25')
        k('s_add_u32 s55, s54, 0x20000')
        for i, db in enumerate(keep):
            for qb in range(2):
                o = Or(db, qb)
                p = S0 + (i * 2 + qb) * 4
                for r in range(4):
                    k(f'v_mul_f32 v{o+r}, v{o+r}, v{T0+qb}')
                    k(f'v_fma_f32 v{o+r}, v{p+r}, v{T0+8+qb}, v{o+r}')
        for i2 in range(2):
            ks = keep[0] // 2 + i2
            for qb in range(2):
                a0, a1 = Or(2 * ks, qb), Or(2 * ks + 1, qb)
                t = R0 + (i2 * 2 + qb) * 4
                k(f'v_cvt_pk_bf16_f32 v{t}, v{a0}, v{a0+1}')
                k(f'v_cvt_pk_bf16_f32 v{t+1}, v{a0+2}, v{a0+3}')
                k(f'v_cvt_pk_bf16_f32 v{t+2}, v{a1}, v{a1+1}')
                k(f'v_cvt_pk_bf16_f32 v{t+3}, v{a1+2}, v{a1+3}')
                k(f'buffer_store_dwordx4 {vr(t)}, v{V_LANE16}, s[12:15], s{54+qb} offen offset:{ks*1024}')
        if grp == 0:
            k(f's_branch {ge}')
    k.label(ge)
    k('s_barrier')


def build_attn():
    k = Kern('att')
    k('s_cmp_ge_u32 s2, 256')
    k('s_cbranch_scc1 att_end')
    tstart(k)
    k(f's_load_dwordx2 s[4:5], s[0:1], {ARG["wq"]}')
    k(f's_load_dwordx2 s[6:7], s[0:1], {ARG["ws"]}')
    k('v_lshrrev_b32 v1, 6, v0')
    k('v_readfirstlane_b32 s22, v1')
    k('v_and_b32 v0, 63, v0')
    k('s_lshr_b32 s23, s22, 2')
    k('s_and_b32 s24, s22, 3')
    k('s_and_b32 s26, s2, 7')
    k('s_lshl_b32 s26, s26, 1')
    k('s_lshr_b32 s25, s2, 3')
    k('s_and_b32 s20, s25, 1')
    k('s_add_u32 s26, s26, s20')
    k('s_and_b32 s20, s25, 2')
    k('s_lshl_b32 s20, s20, 3')
    k('s_add_u32 s26, s26, s20')
    k('s_lshr_b32 s21, s25, 2')
    k('s_sub_u32 s20, 15, s21')
    k('s_cmp_eq_u32 s23, 0')
    k('s_cselect_b32 s27, s20, s21')
    k(f'v_lshlrev_b32 v{V_LANE16}, 4, v0')
    k('v_and_b32 v1, 15, v0')
    k('v_lshrrev_b32 v2, 4, v0')
    k('v_lshlrev_b32 v2, 2, v2')
    k('v_sub_u32 v1, v1, v2')
    k('s_lshl_b32 s25, s24, 5')
    k('s_lshl_b32 s48, s23, 6')
    k('s_sub_u32 s25, s25, s48')
    k(f'v_add_u32 v{V_MD}, s25, v1')
    k(f'v_mov_b32 v{V_NEG}, {f32hex(-1e30)}')
    k(f's_mov_b32 s48, {f32hex(BIAS)}')
    for r in range(4):
        k(f'v_mov_b32 v{ONES+r}, 0x3f803f80')
    k(f's_mov_b32 s49, {f32hex(-1e20)}')
    k('s_waitcnt lgkmcnt(0)')
    srd(k, 28, 4, SIZE['wq'])
    srd(k, 32, 6, 128 * 20480, WS['h'])
    srd(k, 36, 6, 32 << 20, WS['kv'])
    srd(k, 12, 6, 16 << 20, WS['ctx'])
    qproj(k)
    if OPT['prio'] == 2:
        k('s_cmp_eq_u32 s23, 0')
        k('s_cbranch_scc1 att_np')
        k('s_setprio 1')
        k.label('att_np')
    tstamp(k, 1)
    for i in range(4):
        k(f's_mov_b32 s{44+i}, s{36+i}')
    k('s_lshl_b32 s52, s26, 20')
    k('s_lshl_b32 s25, s23, 15')
    k('s_add_u32 s52, s52, s25')
    k('s_lshl_b32 s25, s24, 12')
    k('s_add_u32 s52, s52, s25')
    k('s_lshl_b32 s53, s23, 16')
    k('s_add_u32 s53, s53, s25')
    k('s_barrier')
    k('s_mov_b32 s50, 0')
    kv_dma(k, False, 0)
    kv_dma(k, True, 0)
    kv_dma(k, False, 1)
    k('s_lshr_b32 s25, s24, 1')
    k('s_lshl_b32 s25, s25, 16')
    k('s_and_b32 s54, s24, 1')
    k('s_lshl_b32 s54, s54, 13')
    k('s_add_u32 s25, s25, s54')
    k('s_add_u32 s25, s25, 49152')
    k('s_lshl_b32 s54, s24, 13')
    k(f's_add_u32 s54, s54, {STASH}')
    k('s_cmp_eq_u32 s23, 0')
    k('s_cselect_b32 s55, s25, s54')
    k(f'v_add_u32 v{T0}, s55, v{V_LANE16}')
    k(f'v_add_u32 v{T0+1}, s25, v{V_LANE16}')
    k(f'v_add_u32 v28, s54, v{V_LANE16}')
    for i in range(8):
        k(f'ds_write_b128 v{T0}, {vr(Q0+4*i)} offset:{i*1024}')
    k('s_waitcnt lgkmcnt(0)')
    k('s_barrier')
    for i in range(8):
        k(f'ds_read_b128 {vr(Q0+4*i)}, v{T0+1} offset:{i*1024}')
    k('s_waitcnt lgkmcnt(0)')
    k('s_mov_b32 s27, s20')
    attn_block(k, 'b1')
    tstamp(k, 2)
    k('s_mov_b32 s27, s21')
    k('s_mov_b32 s50, 0')
    kv_dma(k, False, 0)
    kv_dma(k, True, 0)
    sk = k.newlabel('sk')
    k('s_cmp_eq_u32 s27, 0')
    k(f's_cbranch_scc1 {sk}')
    kv_dma(k, False, 1)
    k.label(sk)
    for i in range(8):
        k(f'ds_read_b128 {vr(Q0+4*i)}, v28 offset:{i*1024}')
    k('s_waitcnt lgkmcnt(0)')
    attn_block(k, 'b2')
    tstamp(k, 3)
    tdump(k, 11 if OPT.get('fine') else 4, 6, 1)
    k('s_endpgm')
    k.label('att_end')
    return k, 256, 512, 163840, 256
```

```python
from asmgen import *
import asmgen

XBUF = [0, 32768, 65536]
WBASE = 98304
import os
STMOD = os.environ.get('STMOD', '')


def build_kv():
    k = Kern('kvp')
    k('s_cmp_ge_u32 s2, 256')
    k('s_cbranch_scc1 kvp_end')
    tstart(k)
    k(f's_load_dwordx2 s[4:5], s[0:1], {ARG["ckv"]}')
    k(f's_load_dwordx4 s[8:11], s[0:1], {ARG["wuk"]}')
    k(f's_load_dwordx2 s[6:7], s[0:1], {ARG["ws"]}')
    k('s_and_b32 s20, s2, 31')
    k('s_lshr_b32 s21, s2, 5')
    k('v_lshrrev_b32 v1, 6, v0')
    k('v_readfirstlane_b32 s22, v1')
    k('v_and_b32 v0, 63, v0')
    k('s_lshr_b32 s23, s22, 2')
    k('s_and_b32 s24, s22, 3')
    k('v_lshrrev_b32 v1, 3, v0')
    k('v_lshlrev_b32 v1, 10, v1')
    k('v_and_b32 v2, 7, v0')
    k('v_lshrrev_b32 v3, 4, v0')
    k('v_xor_b32 v2, v2, v3')
    k('v_lshl_or_b32 v4, v2, 4, v1')
    k('v_xor_b32 v5, 64, v4')
    k('v_lshrrev_b32 v1, 5, v0')
    k('v_and_b32 v2, 31, v0')
    k('v_lshlrev_b32 v3, 1, v1')
    k('v_xor_b32 v2, v2, v3')
    k('s_lshl_b32 s25, s22, 2')
    k('s_and_b32 s25, s25, 8')
    k('v_xor_b32 v2, s25, v2')
    k('v_lshlrev_b32 v1, 13, v1')
    k('v_lshl_or_b32 v6, v2, 4, v1')
    k('v_xor_b32 v7, 64, v6')
    k('v_and_b32 v1, 15, v0')
    k('v_lshrrev_b32 v2, 4, v0')
    k('v_lshrrev_b32 v3, 1, v1')
    k('v_xor_b32 v3, v3, v2')
    k('s_lshl_b32 s25, s23, 14')
    k('v_lshlrev_b32 v1, 7, v1')
    k('v_add_u32 v1, s25, v1')
    k('v_lshl_or_b32 v8, v3, 4, v1')
    k('v_xor_b32 v9, 64, v8')
    k('v_add_u32 v10, 0x10000, v8')
    k('v_add_u32 v11, 0x10000, v9')
    k('v_lshrrev_b32 v1, 2, v0')
    k('v_and_b32 v1, 3, v1')
    k('v_lshrrev_b32 v2, 4, v0')
    k('v_lshl_add_u32 v3, v2, 3, v1')
    k('v_lshlrev_b32 v3, 9, v3')
    k('v_and_b32 v2, 1, v2')
    k('v_lshl_add_u32 v1, v2, 2, v1')
    k('v_lshlrev_b32 v1, 1, v1')
    k('v_bfe_u32 v2, v0, 1, 1')
    k('s_lshl_b32 s25, s24, 3')
    k('v_add_u32 v2, s25, v2')
    k('v_xor_b32 v2, v2, v1')
    k('v_lshl_add_u32 v3, v2, 4, v3')
    k('v_and_b32 v1, 1, v0')
    k('v_lshl_add_u32 v3, v1, 3, v3')
    k(f'v_add_u32 v12, {WBASE}, v3')
    for nb in range(1, 4):
        k(f'v_xor_b32 v{12+nb}, {nb*32}, v12')
    k('v_lshlrev_b32 v18, 4, v0')
    k('s_waitcnt lgkmcnt(0)')
    srd(k, 28, 4, SIZE['ckv'])
    k('s_cmp_lt_u32 s20, 16')
    k('s_cselect_b32 s32, s8, s10')
    k('s_cselect_b32 s33, s9, s11')
    k(f's_mov_b32 s34, {SIZE["wuk"]}')
    k('s_mov_b32 s35, 0x00020000')
    srd(k, 36, 6, 32 << 20, WS['kv'])
    k('s_lshl_b32 s40, s21, 18')
    k('s_lshl_b32 s25, s22, 15')
    k('s_add_u32 s40, s40, s25')
    k('s_and_b32 s41, s20, 15')
    k('s_lshl_b32 s41, s41, 9')
    k('s_add_u32 s41, s41, s25')
    k('s_lshl_b32 s42, s22, 12')
    k('s_lshl_b32 s43, s22, 11')
    k(f's_add_u32 s43, s43, {WBASE}')

    issued = []

    def dma_x(S, part):
        out = []
        for q in range(2):
            i = 2 * part + q
            out.append([f's_add_u32 m0, s42, {XBUF[S % 3] + i * 1024}',
                        f's_add_u32 s44, s40, {i * 8192 + S * 128}',
                        f'buffer_load_dwordx4 v{4 + q}, s[28:31], s44 offen lds'])
            issued.append(('x', S))
        return out

    def dma_w(s):
        out = []
        for q in range(2):
            out.append([f's_add_u32 m0, s43, {(s % 4) * 16384 + q * 1024}',
                        f's_add_u32 s44, s41, {s * 32 * 8192 + q * 2 * 8192}',
                        f'buffer_load_dwordx4 v{6 + q}, s[32:35], s44 offen lds'])
            issued.append(('w', s))
        return out

    def emit(lst):
        for g in lst:
            for x in g:
                k(x)

    def wait_for(smax):
        last = -1
        for idx, (t, n) in enumerate(issued):
            if (t == 'w' and n <= smax) or (t == 'x' and n <= smax // 2):
                last = idx
        n = len(issued) - 1 - last
        k(f's_waitcnt vmcnt({n})')

    XF = [64, 80]
    WF = [96, 112]

    def xreads(s, half):
        S = s // 2
        xb = XBUF[S % 3]
        areg = (8 if xb < 65536 else 10) + (s & 1)
        xo = xb & 65535
        return [f'ds_read_b128 v[{XF[half]+4*i}:{XF[half]+4*i+3}], v{areg} offset:{xo + (half*4+i)*2048}' for i in range(4)]

    def wreads(s):
        st = s & 1
        out = []
        for nb in range(4):
            for t in range(2):
                off = (s % 4) * 16384 + t * 2048
                out.append(f'ds_read_b64_tr_b16 v[{WF[st]+4*nb+2*t}:{WF[st]+4*nb+2*t+1}], v{12+nb} offset:{off}')
        return out

    def accr(rb, nb):
        return 128 + (rb * 4 + nb) * 4

    def mfmas(s, half, isk):
        out = []
        st = s & 1
        for i in range(4):
            for nb in range(4):
                acc = accr(half * 4 + i, nb)
                x = f'v[{XF[half]+4*i}:{XF[half]+4*i+3}]'
                w = f'v[{WF[st]+4*nb}:{WF[st]+4*nb+3}]'
                a, b = (w, x) if isk else (x, w)
                c = '0' if s == 0 else f'v[{acc}:{acc+3}]'
                out.append(f'v_mfma_f32_16x16x32_bf16 v[{acc}:{acc+3}], {a}, {b}, {c}')
        return out

    emit(dma_x(0, 0)); emit(dma_x(0, 1)); emit(dma_w(0)); emit(dma_w(1)); emit(dma_x(1, 0)); emit(dma_x(1, 1)); emit(dma_w(2))
    issued0 = list(issued)
    k('s_cmp_lt_u32 s20, 16')
    k('s_cbranch_scc0 kvp_vpath')
    for isk in (True, False):
        issued[:] = issued0
        if not isk:
            k.label('kvp_vpath')
        wait_for(0)
        k('s_barrier')
        tstamp(k, 1)
        for r in wreads(0) + xreads(0, 0):
            k(r)
        for s in range(16):
            if s == 8:
                tstamp(k, 2)
            ms = mfmas(s, 0, isk)
            rs = xreads(s, 1)
            k('s_waitcnt lgkmcnt(0)')
            for i in range(4):
                k(ms[i]); k(rs[i])
            k(ms[4]); k(ms[5])
            if s + 1 < 16:
                wait_for(s + 1)
                k('s_barrier')
            d = []
            if s + 3 < 16:
                d += dma_w(s + 3)
            S2 = s // 2 + 2
            if S2 < 8:
                d += dma_x(S2, s & 1)
            for i in range(6, 16):
                k(ms[i])
                if i % 2 == 0 and d:
                    emit([d.pop(0)])
            ms = mfmas(s, 1, isk)
            k('s_waitcnt lgkmcnt(0)')
            rs = (wreads(s + 1) + xreads(s + 1, 0)) if s + 1 < 16 else []
            for i in range(16):
                k(ms[i])
                if rs:
                    k(rs.pop(0))
        tstamp(k, 3)
        k('s_and_b32 s45, s20, 15')
        k('s_lshl_b32 s45, s45, 21')
        k('s_lshr_b32 s46, s24, 1')
        k('s_lshl_b32 s46, s46, 20')
        k('s_add_u32 s45, s45, s46')
        k('s_lshl_b32 s46, s21, 17')
        k('s_add_u32 s45, s45, s46')
        k('s_lshl_b32 s46, s23, 16')
        k('s_add_u32 s45, s45, s46')
        k('s_and_b32 s46, s24, 1')
        if isk:
            k('s_lshl_b32 s46, s46, 11')
        else:
            k('s_lshl_b32 s46, s46, 12')
        k('s_add_u32 s45, s45, s46')
        n = 0
        if isk:
            lst = [(rb, ks) for rb in range(8) for ks in range(2)]
        else:
            lst = [(u, nb) for u in range(4) for nb in range(4)]
        for (p, q) in lst:
            if isk:
                a0, a1 = accr(p, 2 * q), accr(p, 2 * q + 1)
                off = (p >> 2) * 32768 + ((p & 3) * 4 + q) * 1024
            else:
                a0, a1 = accr(2 * p, q), accr(2 * p + 1, q)
                off = (p >> 1) * 32768 + 16384 + ((p & 1) * 8 + q) * 1024
            tmp = 64 + (n & 7) * 4
            n += 1
            k(f'v_cvt_pk_bf16_f32 v{tmp}, v{a0}, v{a0+1}')
            k(f'v_cvt_pk_bf16_f32 v{tmp+1}, v{a0+2}, v{a0+3}')
            k(f'v_cvt_pk_bf16_f32 v{tmp+2}, v{a1}, v{a1+1}')
            k(f'v_cvt_pk_bf16_f32 v{tmp+3}, v{a1+2}, v{a1+3}')
            k(f's_add_u32 s46, s45, {off}')
            k(f'buffer_store_dwordx4 v[{tmp}:{tmp+3}], v18, s[36:39], s46 offen {STMOD}')
        tstamp(k, 4)
        tdump(k, 5, 6, 0)
        k('s_endpgm')
    k.label('kvp_end')
    return k, 256, 512, 163840, 256
```

```python
from asmgen import *
import asmgen
from k_small import f32hex, vr, unpack, rnd, rnd1, swapsum

GU = WS['moe']
SEL = WS['moe'] + 65536

SORT8 = [(0, 1), (2, 3), (4, 5), (6, 7), (0, 2), (1, 3), (4, 6), (5, 7), (1, 2), (5, 6), (0, 4), (3, 7), (1, 5), (2, 6),
         (1, 4), (3, 6), (2, 4), (3, 5), (3, 4)]


def topk(k, K, T, lds):
    k(f'v_lshlrev_b32 v{T}, 3, v1')
    k(f'v_sub_u32 v{T}, 2047, v{T}')
    for e in range(8):
        k(f'v_ashrrev_i32 v{T+1}, 31, v{K+e}')
        k(f'v_or_b32 v{T+1}, 0x80000000, v{T+1}')
        k(f'v_xor_b32 v{K+e}, v{K+e}, v{T+1}')
        k(f'v_and_b32 v{K+e}, 0xffff0000, v{K+e}')
        k(f'v_sub_u32 v{T+1}, v{T}, {e}' if False else f'v_subrev_u32 v{T+1}, {e}, v{T}')
        k(f'v_or_b32 v{K+e}, v{K+e}, v{T+1}')
    for (a, b) in SORT8:
        k(f'v_max_u32 v{T}, v{K+a}, v{K+b}')
        k(f'v_min_u32 v{K+b}, v{K+a}, v{K+b}')
        k(f'v_mov_b32 v{K+a}, v{T}')
    k(f'v_mov_b32 v{T+3}, 0')
    for t in range(8):
        k(f'v_max_u32_dpp v{T}, v{K}, v{K} row_ror:1 row_mask:0xf bank_mask:0xf')
        for sh in (2, 4, 8):
            k(f'v_max_u32_dpp v{T}, v{T}, v{T} row_ror:{sh} row_mask:0xf bank_mask:0xf')
        swapsum(k, [T], [T + 1], op='v_max_u32')
        k(f'v_cmp_eq_u32 vcc, v{T}, v{K}')
        for e in range(7 - t):
            k(f'v_cndmask_b32 v{K+e}, v{K+e}, v{K+e+1}, vcc')
        k(f'v_cmp_eq_u32 vcc, {t}, v0')
        k(f'v_cndmask_b32 v{T+3}, v{T+3}, v{T}, vcc')
    k('s_lshl_b32 s25, s22, 5')
    k(f'v_lshlrev_b32 v{T}, 2, v0')
    k(f'v_add_u32 v{T+1}, s25, v{T}')
    k('v_cmp_gt_u32 vcc, 8, v0')
    k('s_and_saveexec_b64 s[26:27], vcc')
    k(f'ds_write_b32 v{T+1}, v{T+3} offset:{lds}')
    k('s_mov_b64 exec, s[26:27]')
    k('s_waitcnt lgkmcnt(0)')
    k('s_barrier')
    k(f'v_and_b32 v{T}, 124, v{T}')
    k(f'ds_read_b32 v{T+2}, v{T} offset:{lds}')
    k(f'v_mov_b32 v{T+1}, 0')
    k(f'v_mov_b32 v{T+3}, 0')
    for i in range(8):
        tt = T + 4 + (i & 1) * 4
        k(f'ds_read_b128 {vr(tt)}, v{T+1} offset:{lds + i*16}')
        k('s_waitcnt lgkmcnt(0)')
        for e in range(4):
            k(f'v_cmp_gt_u32 vcc, v{tt+e}, v{T+2}')
            k(f'v_addc_co_u32 v{T+3}, vcc, 0, v{T+3}, vcc')
    k(f'v_lshlrev_b32 v{T+1}, 2, v{T+3}')
    k(f'v_cmp_gt_u32 vcc, 8, v{T+3}')
    k('s_and_saveexec_b64 s[26:27], vcc')
    k(f'ds_write_b32 v{T+1}, v{T+2} offset:{lds+256}')
    k('s_mov_b64 exec, s[26:27]')
    k('s_waitcnt lgkmcnt(0)')


def tr_addr(k, d):
    k('v_lshrrev_b32 v2, 4, v0')
    k('v_bfe_u32 v3, v0, 2, 2')
    k('v_lshl_add_u32 v2, v2, 3, v3')
    k('v_and_b32 v3, 3, v0')
    k('v_lshlrev_b32 v3, 3, v3')
    k(f'v_lshl_add_u32 v{d}, v2, 5, v3')


def build_moe1():
    k = Kern('mo1')
    k('s_and_b32 s20, s2, 7')
    k('s_lshl_b32 s20, s20, 4')
    k('s_lshr_b32 s21, s2, 3')
    k('s_add_u32 s20, s20, s21')
    k('s_cmp_ge_u32 s2, 128')
    k('s_cbranch_scc1 mo1_end')
    k('s_cmp_ge_u32 s20, 108')
    k('s_cbranch_scc1 mo1_end')
    k(f's_load_dwordx4 s[4:7], s[0:1], {ARG["wg"]}')
    k(f's_load_dwordx2 s[8:9], s[0:1], {ARG["ws"]}')
    k('v_mov_b32 v1, v0')
    k('v_lshrrev_b32 v2, 6, v0')
    k('v_readfirstlane_b32 s22, v2')
    k('v_and_b32 v0, 63, v0')
    k('v_lshrrev_b32 v2, 1, v0')
    k('v_mul_u32_u24 v2, 3456, v2')
    k('v_and_b32 v3, 1, v0')
    k('v_lshl_add_u32 v4, v3, 4, v2')
    k('v_lshlrev_b32 v5, 5, v1')
    tr_addr(k, 6)
    k('s_mul_i32 s23, s22, 10240')
    k('v_add_u32 v6, s23, v6')
    k(f's_mul_i32 s24, s22, {160*3456}')
    k('s_lshl_b32 s25, s20, 5')
    k('s_add_u32 s24, s24, s25')
    k('s_waitcnt lgkmcnt(0)')
    srd(k, 12, 4, SIZE['wg'])
    srd(k, 16, 6, SIZE['wu'])
    srd(k, 28, 8, 8192, WS['r'])
    srd(k, 32, 8, SIZE['out'], WS['h2'])
    srd(k, 36, 8, 1 << 20, WS['moe'])
    k(f'buffer_load_dwordx4 {vr(8)}, v5, s[28:31], 0 offen')
    k(f'buffer_load_dwordx4 {vr(12)}, v5, s[28:31], 0 offen offset:16')
    for m in range(2):
        for i in range(5):
            k(f's_add_u32 m0, s23, {m*5120 + i*1024}')
            k(f's_add_u32 s25, s24, {i*32*3456}')
            k(f'buffer_load_dwordx4 v4, s[{12+4*m}:{15+4*m}], s25 offen lds')
    k('s_waitcnt vmcnt(10)')
    LT = 40960
    topk(k, 8, 16, LT)
    k('v_and_b32 v2, 7, v0')
    k('v_lshlrev_b32 v2, 2, v2')
    k(f'ds_read_b32 v7, v2 offset:{LT+256}')
    k('s_waitcnt lgkmcnt(0)')
    k('v_and_b32 v3, 2047, v7')
    k('v_sub_u32 v3, 2047, v3')
    k('v_mul_u32_u24 v3, 1280, v3')
    k('v_lshrrev_b32 v8, 4, v0')
    k('v_lshl_add_u32 v3, v8, 4, v3')
    k('s_mul_i32 s25, s22, 320')
    for i in range(5):
        k(f'buffer_load_dwordx4 {vr(32+4*i)}, v3, s[32:35], s25 offen offset:{i*64}')
    k('s_waitcnt vmcnt(5)')
    for m in range(2):
        for i in range(5):
            for t in range(2):
                r = 56 + (m * 5 + i) * 4 + 2 * t
                k(f'ds_read_b64_tr_b16 v[{r}:{r+1}], v6 offset:{m*5120 + i*1024 + t*128}')
    k('s_waitcnt vmcnt(0) lgkmcnt(0)')
    for i in range(5):
        for m in range(2):
            acc = 96 + 4 * m
            k(f'v_mfma_f32_16x16x32_bf16 {vr(acc)}, {vr(56 + (m*5+i)*4)}, {vr(32+4*i)}, {"0" if i == 0 else vr(acc)}')
    LR = 41984
    k('s_lshl_b32 s25, s22, 11')
    k('v_lshlrev_b32 v9, 4, v0')
    k('v_add_u32 v10, s25, v9')
    k(f'ds_write_b128 v10, {vr(96)} offset:{LR}')
    k(f'ds_write_b128 v10, {vr(100)} offset:{LR+1024}')
    k('s_waitcnt lgkmcnt(0)')
    k('s_barrier')
    k('s_cmp_lg_u32 s22, 0')
    k('s_cbranch_scc1 mo1_end')
    for w in range(1, 4):
        for m in range(2):
            k(f'ds_read_b128 {vr(32 + (w-1)*8 + m*4)}, v9 offset:{LR + w*2048 + m*1024}')
    k('s_waitcnt lgkmcnt(0)')
    for w in range(1, 4):
        for e in range(8):
            k(f'v_add_f32 v{96+e}, v{96+e}, v{32+(w-1)*8+e}')
    rnd(k, list(range(96, 104)), 16)
    k(f's_mov_b32 s25, {f32hex(-1.4426950408889634)}')
    for e in range(4):
        k(f'v_mul_f32 v{16+e}, s25, v{96+e}')
        k(f'v_exp_f32 v{16+e}, v{16+e}')
        k(f'v_add_f32 v{16+e}, 1.0, v{16+e}')
        k(f'v_rcp_f32 v{16+e}, v{16+e}')
        k(f'v_mul_f32 v{96+e}, v{96+e}, v{16+e}')
    rnd(k, list(range(96, 100)), 16)
    for e in range(4):
        k(f'v_mul_f32 v{96+e}, v{96+e}, v{100+e}')
    k('v_cvt_pk_bf16_f32 v16, v96, v97')
    k('v_cvt_pk_bf16_f32 v17, v98, v99')
    k('v_and_b32 v2, 15, v0')
    k('v_mul_u32_u24 v3, 3456, v2')
    k('v_lshl_add_u32 v3, v8, 3, v3')
    k('s_lshl_b32 s25, s20, 5')
    k('v_lshlrev_b32 v11, 2, v0')
    k('v_cmp_gt_u32 vcc, 8, v2')
    k('s_and_saveexec_b64 s[26:27], vcc')
    k('buffer_store_dwordx2 v[16:17], v3, s[36:39], s25 offen')
    k('s_cmp_lg_u32 s20, 0')
    k('s_cbranch_scc1 mo1_end')
    k('v_cmp_gt_u32 vcc, 8, v0')
    k('s_and_b64 exec, exec, vcc')
    k('s_mov_b32 s25, 65536')
    k('buffer_store_dword v7, v11, s[36:39], s25 offen')
    k.label('mo1_end')
    return k, 128, 256, 41984 + 8192, 104


def build_moe2():
    k = Kern('mo2')
    k('s_and_b32 s20, s2, 7')
    k('s_lshl_b32 s20, s20, 3')
    k('s_lshr_b32 s21, s2, 3')
    k('s_add_u32 s20, s20, s21')
    k('s_cmp_ge_u32 s2, 64')
    k('s_cbranch_scc1 mo2_end')
    k('s_cmp_ge_u32 s20, 40')
    k('s_cbranch_scc1 mo2_end')
    k(f's_load_dwordx2 s[4:5], s[0:1], {ARG["wd"]}')
    k(f's_load_dwordx2 s[6:7], s[0:1], {ARG["out"]}')
    k(f's_load_dwordx2 s[8:9], s[0:1], {ARG["ws"]}')
    k('v_lshrrev_b32 v2, 6, v0')
    k('v_readfirstlane_b32 s22, v2')
    k('v_and_b32 v0, 63, v0')
    k('v_lshrrev_b32 v2, 1, v0')
    k('v_mul_u32_u24 v2, 1280, v2')
    k('v_and_b32 v3, 1, v0')
    k('v_lshl_add_u32 v4, v3, 4, v2')
    tr_addr(k, 6)
    k('s_mul_i32 s23, s22, 9216')
    k('v_add_u32 v6, s23, v6')
    k(f's_mul_i32 s24, s22, {288*1280}')
    k('s_lshl_b32 s25, s20, 5')
    k('s_add_u32 s24, s24, s25')
    k('v_and_b32 v2, 7, v0')
    k('v_lshlrev_b32 v5, 2, v2')
    k('v_mul_u32_u24 v3, 3456, v2')
    k('v_lshrrev_b32 v8, 4, v0')
    k('v_lshl_add_u32 v3, v8, 4, v3')
    k('v_lshlrev_b32 v9, 4, v8')
    k('s_waitcnt lgkmcnt(0)')
    srd(k, 12, 4, SIZE['wd'])
    srd(k, 16, 6, SIZE['out'])
    srd(k, 28, 8, 3840 * 4, WS['modp'])
    srd(k, 32, 8, SIZE['out'], WS['h2'])
    srd(k, 36, 8, 1 << 20, WS['moe'])
    srd(k, 40, 8, SIZE['out'], WS['x1'])
    k('s_mov_b32 s25, 65536')
    k('buffer_load_dword v7, v5, s[36:39], s25 offen')
    for i in range(9):
        k(f's_add_u32 m0, s23, {i*1024}')
        k(f's_add_u32 s25, s24, {i*32*1280}')
        k('buffer_load_dwordx4 v4, s[12:15], s25 offen lds')
    k('s_mul_i32 s25, s22, 576')
    for i in range(9):
        k(f'buffer_load_dwordx4 {vr(32+4*i)}, v3, s[36:39], s25 offen offset:{i*64}')
    k('s_lshl_b32 s25, s20, 6')
    k(f's_add_u32 s25, s25, {5*2560}')
    k(f'buffer_load_dwordx4 {vr(20)}, v9, s[28:31], s25 offen')
    k('s_waitcnt vmcnt(19)')
    k('v_and_b32 v10, 2047, v7')
    k('v_sub_u32 v10, 2047, v10')
    k('v_mul_u32_u24 v10, 1280, v10')
    k('v_lshl_add_u32 v10, v8, 3, v10')
    k('s_lshl_b32 s21, s20, 5')
    k('buffer_load_dwordx2 v[24:25], v10, s[32:35], s21 offen')
    k('buffer_load_dwordx2 v[26:27], v10, s[40:43], s21 offen')
    k('s_waitcnt vmcnt(12)')
    for i in range(9):
        for t in range(2):
            r = 68 + i * 4 + 2 * t
            k(f'ds_read_b64_tr_b16 v[{r}:{r+1}], v6 offset:{i*1024 + t*128}')
    k('s_waitcnt vmcnt(3) lgkmcnt(0)')
    for i in range(9):
        k(f'v_mfma_f32_16x16x32_bf16 {vr(104)}, {vr(68 + i*4)}, {vr(32+4*i)}, {"0" if i == 0 else vr(104)}')
    LR = 6 * 9216
    k('s_lshl_b32 s25, s22, 10')
    k('v_lshlrev_b32 v11, 4, v0')
    k('v_add_u32 v12, s25, v11')
    k(f'ds_write_b128 v12, {vr(104)} offset:{LR}')
    k('s_waitcnt lgkmcnt(0)')
    k('s_barrier')
    k('s_cmp_lg_u32 s22, 0')
    k('s_cbranch_scc1 mo2_end')
    for w in range(1, 6):
        k(f'ds_read_b128 {vr(32 + (w-1)*4)}, v11 offset:{LR + w*1024}')
    k('v_and_b32 v13, 0xffff0000, v7')
    k('v_ashrrev_i32 v14, 31, v13')
    k('v_not_b32 v14, v14')
    k('v_or_b32 v14, 0x80000000, v14')
    k('v_xor_b32 v13, v13, v14')
    k('v_and_b32 v13, 0xffff0000, v13')
    k(f'v_mul_f32 v13, {f32hex(-1.4426950408889634)}, v13')
    k('v_exp_f32 v13, v13')
    k('v_add_f32 v13, 1.0, v13')
    k('v_rcp_f32 v13, v13')
    rnd1(k, 13)
    k('s_waitcnt vmcnt(0) lgkmcnt(0)')
    for w in range(1, 6):
        for e in range(4):
            k(f'v_add_f32 v{104+e}, v{104+e}, v{32+(w-1)*4+e}')
    Y = list(range(104, 108))
    rnd(k, Y, 16)
    for e in range(4):
        k(f'v_mul_f32 v{104+e}, v{104+e}, v13')
    rnd(k, Y, 16)
    unpack(k, 32, 24, 4)
    for e in range(4):
        k(f'v_add_f32 v{104+e}, v{104+e}, v{32+e}')
    rnd(k, Y, 16)
    for e in range(4):
        k(f'v_mul_f32 v{104+e}, v{104+e}, v{20+e}')
    rnd(k, Y, 16)
    for e in range(4):
        k(f'v_add_f32 v{104+e}, v{104+e}, v{36+e}')
    k('v_cvt_pk_bf16_f32 v16, v104, v105')
    k('v_cvt_pk_bf16_f32 v17, v106, v107')
    k('v_and_b32 v2, 15, v0')
    k('v_cmp_gt_u32 vcc, 8, v2')
    k('s_and_saveexec_b64 s[26:27], vcc')
    k('buffer_store_dwordx2 v[16:17], v10, s[16:19], s21 offen')
    k.label('mo2_end')
    return k, 64, 384, 6 * 9216 + 6144, 108
```

```python
from asmgen import *
import asmgen

PSTRIDE = 128 * 20480
ACC = 176
WF = [96, 136]
CX = 32
ND = 8


def vr(b, n=4):
    return f'v[{b}:{b+n-1}]'


def build_oproj():
    k = Kern('opj')
    k('s_cmp_ge_u32 s2, 256')
    k('s_cbranch_scc1 opj_end')
    tstart(k)
    k(f's_load_dwordx2 s[4:5], s[0:1], {ARG["wo"]}')
    k(f's_load_dwordx2 s[6:7], s[0:1], {ARG["ws"]}')
    k('v_lshrrev_b32 v1, 6, v0')
    k('v_readfirstlane_b32 s22, v1')
    k('s_and_b32 s20, s2, 7')
    k('s_lshr_b32 s21, s2, 3')
    k('s_and_b32 s23, s21, 3')
    k('s_lshr_b32 s21, s21, 2')
    k('s_mov_b32 s25, 52429')
    k('s_movk_i32 s26, 1280')
    for i in range(5):
        k(f'v_add_u32 v1, {i*512}, v0')
        k('v_mul_lo_u32 v2, v1, s25')
        k('v_lshrrev_b32 v2, 20, v2')
        k('v_mul_u32_u24 v3, 20, v2')
        k('v_sub_u32 v3, v1, v3')
        k('v_bfe_u32 v1, v2, 2, 1')
        k('v_xor_b32 v3, v3, v1')
        k('v_mul_lo_u32 v2, v2, s26')
        k(f'v_lshl_add_u32 v{8+i}, v3, 4, v2')
    k('v_and_b32 v0, 63, v0')
    k('v_lshlrev_b32 v18, 4, v0')
    k('v_lshrrev_b32 v1, 2, v0')
    k('v_mul_u32_u24 v1, 320, v1')
    k('v_and_b32 v2, 3, v0')
    k('v_bfe_u32 v3, v0, 4, 1')
    k('v_xor_b32 v3, v3, v2')
    k('v_lshl_add_u32 v1, v3, 4, v1')
    k('v_and_b32 v2, 1, v0')
    k('v_lshl_add_u32 v14, v2, 3, v1')
    k('v_xor_b32 v15, 8, v14')
    k('s_waitcnt lgkmcnt(0)')
    srd(k, 28, 4, SIZE['wo'])
    srd(k, 32, 6, 16 << 20, WS['ctx'])
    srd(k, 36, 6, 8 * PSTRIDE, WS['part'])
    k('s_mul_i32 s40, s20, 327680')
    k('s_mul_i32 s25, s23, 320')
    k('s_add_u32 s40, s40, s25')
    k('s_lshl_b32 s42, s22, 10')
    k('s_lshl_b32 s41, s21, 4')
    k('s_lshl_b32 s25, s22, 1')
    k('s_add_u32 s41, s41, s25')
    k('s_mul_i32 s45, s41, 20480')
    k('s_lshl_b32 s41, s41, 17')
    k('s_lshl_b32 s25, s20, 13')
    k('s_add_u32 s41, s41, s25')
    k('s_add_u32 s43, s41, 0x20000')
    HOFF = [0, 1, 16, 17]
    issued = []

    def wpiece(hd, i):
        issued.append(('w', hd * 5 + i))
        return [f's_add_u32 m0, s42, {hd*40960 + i*8192}',
                f's_add_u32 s44, s40, {HOFF[hd]*128*1280}',
                f'buffer_load_dwordx4 v{8+i}, s[28:31], s44 offen lds']

    def cload(s, rb):
        issued.append(('c', s))
        hd, ks = s // 4, s % 4
        r = CX + (s % ND) * 8 + rb * 4
        return [f's_add_u32 s44, s{41 if rb == 0 else 43}, {HOFF[hd]*4096}',
                f'buffer_load_dwordx4 {vr(r)}, v18, s[32:35], s44 offen offset:{ks*1024}']

    def loads_for(s):
        hd, ks = s // 4, s % 4
        g = [cload(s, 0), cload(s, 1)]
        if ks == 0:
            g.append(wpiece(hd, 0))
        g.append(wpiece(hd, ks + 1))
        return g

    def wneed(s):
        return (s // 4) * 5 + (s % 4) + 1

    def emit(lst):
        for g in lst:
            for x in g:
                k(x)

    def wait(pred):
        last = -1
        for idx, t in enumerate(issued):
            if pred(t):
                last = idx
        k(f's_waitcnt vmcnt({len(issued) - 1 - last})')

    def wreads(s):
        out = []
        for j in range(5):
            for b in range(2):
                for t in range(2):
                    r = WF[s & 1] + (2 * j + b) * 4 + 2 * t
                    out.append(f'ds_read_b64_tr_b16 v[{r}:{r+1}], v{14+b} offset:{64*j + 5120*t}')
        return out

    for s in range(ND):
        emit(loads_for(s))
    wait(lambda t: t[0] == 'w' and t[1] <= wneed(0))
    k('s_barrier')
    tstamp(k, 1)
    for r in wreads(0):
        k(r)
    for s in range(16):
        k('v_add_u32 v14, 10240, v14')
        k('v_add_u32 v15, 10240, v15')
        wait(lambda t: t[0] == 'c' and t[1] <= s)
        k('s_waitcnt lgkmcnt(0)')
        ms = []
        for nb in range(10):
            for rb in range(2):
                acc = ACC + (rb * 10 + nb) * 4
                c = '0' if s == 0 else vr(acc)
                ms.append(f'v_mfma_f32_16x16x32_bf16 {vr(acc)}, {vr(WF[s & 1] + 4*nb)}, {vr(CX + (s % ND)*8 + rb*4)}, {c}')
        rs = wreads(s + 1) if s + 1 < 16 else []
        extra = []
        for i in range(20):
            if i == 2 and s % 2 == 0 and s + 1 < 16:
                wait(lambda t: t[0] == 'w' and t[1] <= wneed(min(s + 2, 15)))
                k('s_barrier')
            k(ms[i])
            if i >= 2 or s % 2 == 1:
                for _ in range(2 if (i < 6) else 1):
                    if rs:
                        k(rs.pop(0))
        assert not rs
        if s + ND < 16:
            emit(loads_for(s + ND))
    tstamp(k, 2)
    k('v_bfe_u32 v1, v0, 4, 1')
    k('v_cmp_eq_u32 vcc, 1, v1')
    k(f's_mul_i32 s25, s20, {PSTRIDE}')
    k('s_add_u32 s45, s45, s25')
    k('s_mul_i32 s25, s23, 5120')
    k('s_add_u32 s45, s45, s25')
    n = 0
    for rb in range(2):
        for j in range(5):
            a0, a1 = ACC + (rb * 10 + 2 * j) * 4, ACC + (rb * 10 + 2 * j + 1) * 4
            t = 32 + (n % 4) * 8
            n += 1
            k(f'v_cvt_pk_bf16_f32 v{t}, v{a0}, v{a0+1}')
            k(f'v_cvt_pk_bf16_f32 v{t+1}, v{a0+2}, v{a0+3}')
            k(f'v_cvt_pk_bf16_f32 v{t+2}, v{a1}, v{a1+1}')
            k(f'v_cvt_pk_bf16_f32 v{t+3}, v{a1+2}, v{a1+3}')
            k(f'v_cndmask_b32 v{t+4}, v{t}, v{t+2}, vcc')
            k(f'v_cndmask_b32 v{t+5}, v{t+1}, v{t+3}, vcc')
            k(f'v_cndmask_b32 v{t+6}, v{t+2}, v{t}, vcc')
            k(f'v_cndmask_b32 v{t+7}, v{t+3}, v{t+1}, vcc')
            k(f's_add_u32 s44, s45, {rb*20480 + j*1024}')
            k(f'buffer_store_dwordx4 {vr(t+4)}, v18, s[36:39], s44 offen')
    tstamp(k, 3)
    tdump(k, 4, 6, 2)
    k('s_endpgm')
    k.label('opj_end')
    return k, 256, 512, 163840, 256
```

```python
from asmgen import *
import asmgen
import struct


def f32hex(x):
    return hex(struct.unpack('<I', struct.pack('<f', x))[0])


def vr(b, n=4):
    return f'v[{b}:{b+n-1}]'


def unpack(k, dst, src, n):
    for i in range(n):
        k(f'v_lshlrev_b32 v{dst+2*i}, 16, v{src+i}')
        k(f'v_and_b32 v{dst+2*i+1}, 0xffff0000, v{src+i}')


def rnd(k, regs, tmp):
    for i in range(0, len(regs), 2):
        k(f'v_cvt_pk_bf16_f32 v{tmp}, v{regs[i]}, v{regs[i+1]}')
        k(f'v_lshlrev_b32 v{regs[i]}, 16, v{tmp}')
        k(f'v_and_b32 v{regs[i+1]}, 0xffff0000, v{tmp}')


def rnd1(k, r):
    k(f'v_cvt_pk_bf16_f32 v{r}, v{r}, v{r}')
    k(f'v_lshlrev_b32 v{r}, 16, v{r}')


def swapsum(k, regs, tmps, which=('32', '16'), op='v_add_f32'):
    for w in which:
        for r, t in zip(regs, tmps):
            k(f'v_mov_b32 v{t}, v{r}')
        for r, t in zip(regs, tmps):
            k(f'v_permlane{w}_swap_b32 v{r}, v{t}')
        for r, t in zip(regs, tmps):
            k(f'{op} v{r}, v{r}, v{t}')


def build_mod():
    k = Kern('mod')
    k('s_and_b32 s20, s2, 7')
    k('s_lshl_b32 s20, s20, 5')
    k('s_lshr_b32 s21, s2, 3')
    k('s_add_u32 s20, s20, s21')
    k('s_cmp_ge_u32 s2, 256')
    k('s_cbranch_scc1 mod_end')
    k('s_cmp_ge_u32 s20, 240')
    k('s_cbranch_scc1 mod_end')
    k(f's_load_dwordx4 s[4:7], s[0:1], {ARG["c"]}')
    k(f's_load_dwordx2 s[8:9], s[0:1], {ARG["ws"]}')
    k('v_lshrrev_b32 v1, 1, v0')
    k('v_and_b32 v2, 1, v0')
    k('s_movk_i32 s22, 7680')
    k('v_mul_lo_u32 v3, v1, s22')
    k('v_lshl_add_u32 v3, v2, 4, v3')
    k('v_lshlrev_b32 v4, 1, v1')
    k('s_lshl_b32 s23, s20, 5')
    k('s_waitcnt lgkmcnt(0)')
    srd(k, 12, 4, SIZE['c'])
    srd(k, 16, 6, SIZE['wmod'])
    srd(k, 24, 8, 3840 * 4, WS['modp'])
    for i in range(5):
        k(f'buffer_load_ushort v{8+i}, v4, s[12:15], 0 offen offset:{i*256}')
    for i in range(5):
        k(f's_add_u32 s22, s23, {i*128*7680}')
        k(f'buffer_load_dwordx4 {vr(16+4*i)}, v3, s[16:19], s22 offen')
    k('s_waitcnt vmcnt(5)')
    k(f's_mov_b32 s22, {f32hex(-1.4426950408889634)}')
    for i in range(5):
        k(f'v_lshlrev_b32 v{8+i}, 16, v{8+i}')
        k(f'v_mul_f32 v{40+i}, s22, v{8+i}')
        k(f'v_exp_f32 v{40+i}, v{40+i}')
        k(f'v_add_f32 v{40+i}, 1.0, v{40+i}')
        k(f'v_rcp_f32 v{40+i}, v{40+i}')
        k(f'v_mul_f32 v{8+i}, v{8+i}, v{40+i}')
        rnd1(k, 8 + i)
    for i in range(5):
        k(f's_waitcnt vmcnt({4-i})')
        unpack(k, 40, 16 + 4 * i, 4)
        for e in range(8):
            if i == 0:
                k(f'v_mul_f32 v{48+e}, v{8+i}, v{40+e}')
            else:
                k(f'v_fmac_f32 v{48+e}, v{8+i}, v{40+e}')
    for sh in (2, 4, 8):
        for e in range(8):
            k(f'v_add_f32_dpp v{48+e}, v{48+e}, v{48+e} row_ror:{sh} row_mask:0xf bank_mask:0xf')
    swapsum(k, list(range(48, 56)), list(range(40, 48)))
    k('v_lshrrev_b32 v1, 6, v0')
    k('v_lshlrev_b32 v1, 6, v1')
    k('v_lshl_add_u32 v1, v2, 5, v1')
    k('v_and_b32 v5, 62, v0')
    k('v_cmp_eq_u32 vcc, 0, v5')
    k('s_and_saveexec_b64 s[28:29], vcc')
    k(f'ds_write_b128 v1, {vr(48)}')
    k(f'ds_write_b128 v1, {vr(52)} offset:16')
    k('s_mov_b64 exec, s[28:29]')
    k('s_waitcnt lgkmcnt(0)')
    k('s_barrier')
    k('v_lshlrev_b32 v1, 2, v0')
    k('v_cmp_gt_u32 vcc, 16, v0')
    k('s_and_saveexec_b64 s[28:29], vcc')
    k('s_cbranch_execz mod_end')
    for i in range(4):
        k(f'ds_read_b32 v{8+i}, v1 offset:{i*64}')
    k('s_waitcnt lgkmcnt(0)')
    k('v_add_f32 v8, v8, v9')
    k('v_add_f32 v10, v10, v11')
    k('v_add_f32 v8, v8, v10')
    rnd1(k, 8)
    k('s_lshl_b32 s23, s20, 6')
    k('buffer_store_dword v8, v1, s[24:27], s23 offen')
    k.label('mod_end')
    return k, 256, 256, 256, 64


def row_setup(k):
    k('v_lshrrev_b32 v1, 6, v0')
    k('v_readfirstlane_b32 s22, v1')
    k('v_and_b32 v0, 63, v0')
    k('v_and_b32 v1, 7, v0')
    k('v_bfe_u32 v6, v0, 3, 2')
    k('v_lshrrev_b32 v7, 5, v0')
    k('s_lshl_b32 s25, s22, 2')
    k('v_add_u32 v7, s25, v7')
    k('v_lshlrev_b32 v2, 6, v7')
    k('v_lshl_add_u32 v2, v6, 4, v2')
    k('s_movk_i32 s25, 1280')
    k('v_mad_u32_u24 v3, v1, s25, v2')
    k('s_and_b32 s25, s2, 1')
    k('s_lshl_b32 s25, s25, 3')
    k('v_lshl_add_u32 v4, v6, 4, v1')
    k('v_add_u32 v4, s25, v4')
    k('v_lshlrev_b32 v4, 4, v4')
    k('v_lshl_add_u32 v4, v7, 10, v4')
    k('v_lshlrev_b32 v5, 5, v1')
    k('s_mul_i32 s23, s2, 10240')
    k('s_lshr_b32 s24, s2, 1')
    k('s_mul_i32 s24, s24, 20480')
    k('s_lshl_b32 s26, s22, 2')
    k('v_add_u32 v6, s26, v5')


def row_reduce(k, r, t, ldsoff):
    k(f'v_add_f32_dpp v{r}, v{r}, v{r} row_ror:8 row_mask:0xf bank_mask:0xf')
    swapsum(k, [r], [t])
    k(f'ds_write_b32 v6, v{r} offset:{ldsoff}')
    k('s_waitcnt lgkmcnt(0)')
    k('s_barrier')
    k(f'ds_read_b128 {vr(t)}, v5 offset:{ldsoff}')
    k(f'ds_read_b32 v{t+4}, v5 offset:{ldsoff+16}')
    k('s_waitcnt lgkmcnt(0)')
    k(f'v_add_f32 v{t}, v{t}, v{t+1}')
    k(f'v_add_f32 v{t+2}, v{t+2}, v{t+3}')
    k(f'v_add_f32 v{t}, v{t}, v{t+4}')
    k(f'v_add_f32 v{r}, v{t}, v{t+2}')


def layernorm_mod(k, X, D, C, S, T, ldsoff):
    a = T + 6
    k(f'v_add_f32 v{a}, v{X}, v{X+1}')
    k(f'v_add_f32 v{T+7}, v{X+2}, v{X+3}')
    for i in range(4, 16, 2):
        k(f'v_add_f32 v{a}, v{a}, v{X+i}')
        k(f'v_add_f32 v{T+7}, v{T+7}, v{X+i+1}')
    k(f'v_add_f32 v{a}, v{a}, v{T+7}')
    row_reduce(k, a, T, ldsoff)
    k(f'v_mul_f32 v{a}, {f32hex(1.0/640)}, v{a}')
    b = T + 7
    for i in range(16):
        k(f'v_sub_f32 v{D+i}, v{X+i}, v{a}')
    k(f'v_mul_f32 v{b}, v{D}, v{D}')
    for i in range(1, 16):
        k(f'v_fmac_f32 v{b}, v{D+i}, v{D+i}')
    row_reduce(k, b, T, ldsoff + 256)
    k(f'v_mul_f32 v{b}, {f32hex(1.0/640)}, v{b}')
    rnd1(k, b)
    rnd1(k, a)
    k(f'v_add_f32 v{b}, {f32hex(1e-5)}, v{b}')
    rnd1(k, b)
    k(f'v_sqrt_f32 v{b}, v{b}')
    rnd1(k, b)
    k(f'v_rcp_f32 v{b}, v{b}')
    for i in range(16):
        k(f'v_sub_f32 v{D+i}, v{X+i}, v{a}')
    rnd(k, list(range(D, D + 16)), T)
    for i in range(16):
        k(f'v_mul_f32 v{D+i}, v{D+i}, v{b}')
    rnd(k, list(range(D, D + 16)), T)
    for i in range(16):
        k(f'v_add_f32 v{C+i}, 1.0, v{C+i}')
    rnd(k, list(range(C, C + 16)), T)
    for i in range(16):
        k(f'v_mul_f32 v{D+i}, v{D+i}, v{C+i}')
    rnd(k, list(range(D, D + 16)), T)
    for i in range(16):
        k(f'v_add_f32 v{D+i}, v{D+i}, v{S+i}')


def load_mod(k, dst, idx, srdn):
    for s in range(2):
        for hh in range(2):
            off = idx * 2560 + s * 256 + hh * 16
            k(f's_movk_i32 s27, {off}')
            k(f'buffer_load_dwordx4 {vr(dst + s*8 + hh*4)}, v7, s[{srdn}:{srdn+3}], s27 offen')


def build_h():
    k = Kern('hk')
    k('s_cmp_ge_u32 s2, 256')
    k('s_cbranch_scc1 hk_end')
    k(f's_load_dwordx2 s[4:5], s[0:1], {ARG["x"]}')
    k(f's_load_dwordx2 s[8:9], s[0:1], {ARG["ws"]}')
    row_setup(k)
    k('v_lshlrev_b32 v7, 1, v2')
    k('s_waitcnt lgkmcnt(0)')
    srd(k, 12, 4, SIZE['x'])
    srd(k, 16, 8, 3840 * 4, WS['modp'])
    srd(k, 28, 8, 128 * 20480, WS['h'])
    k(f'buffer_load_dwordx4 {vr(8)}, v3, s[12:15], s23 offen')
    k(f'buffer_load_dwordx4 {vr(12)}, v3, s[12:15], s23 offen offset:128')
    load_mod(k, 64, 0, 16)
    load_mod(k, 48, 1, 16)
    k('s_waitcnt vmcnt(8)')
    unpack(k, 16, 8, 8)
    k('s_waitcnt vmcnt(0)')
    layernorm_mod(k, 16, 32, 48, 64, 80, 0)
    for i in range(8):
        k(f'v_cvt_pk_bf16_f32 v{8+i}, v{32+2*i}, v{33+2*i}')
    k(f'buffer_store_dwordx4 {vr(8)}, v4, s[28:31], s24 offen')
    k(f'buffer_store_dwordx4 {vr(12)}, v4, s[28:31], s24 offen offset:2048')
    k.label('hk_end')
    return k, 256, 320, 1024, 88


NSPLIT = 8
PSTRIDE = 128 * 20480


def build_fin():
    k = Kern('fin')
    k('s_cmp_ge_u32 s2, 256')
    k('s_cbranch_scc1 fin_end')
    k(f's_load_dwordx2 s[4:5], s[0:1], {ARG["x"]}')
    k(f's_load_dwordx2 s[6:7], s[0:1], {ARG["wr"]}')
    k(f's_load_dwordx2 s[8:9], s[0:1], {ARG["ws"]}')
    k(f's_load_dwordx2 s[10:11], s[0:1], {ARG["out"]}')
    row_setup(k)
    k('v_lshlrev_b32 v7, 1, v2')
    k('s_waitcnt lgkmcnt(0)')
    srd(k, 12, 4, SIZE['x'])
    srd(k, 16, 8, 3840 * 4, WS['modp'])
    srd(k, 28, 8, NSPLIT * PSTRIDE, WS['part'])
    srd(k, 32, 6, SIZE['wr'])
    srd(k, 36, 10, SIZE['out'])
    srd(k, 40, 8, SIZE['out'], WS['h2'])
    srd(k, 44, 8, SIZE['out'], WS['x1'])
    srd(k, 48, 8, 8192, WS['r'])
    P = 96
    for p in range(NSPLIT):
        k(f's_add_u32 s27, s24, {p*PSTRIDE}')
        k(f'buffer_load_dwordx4 {vr(P+8*p)}, v4, s[28:31], s27 offen')
        k(f'buffer_load_dwordx4 {vr(P+8*p+4)}, v4, s[28:31], s27 offen offset:2048')
    k(f'buffer_load_dwordx4 {vr(8)}, v3, s[12:15], s23 offen')
    k(f'buffer_load_dwordx4 {vr(12)}, v3, s[12:15], s23 offen offset:128')
    load_mod(k, 160, 2, 16)
    load_mod(k, 64, 3, 16)
    load_mod(k, 48, 4, 16)
    load_mod(k, 176, 5, 16)
    k(f'buffer_load_dwordx4 {vr(88)}, v2, s[32:35], 0 offen')
    k(f'buffer_load_dwordx4 {vr(92)}, v2, s[32:35], 0 offen offset:128')
    A = 32
    nl = 2 * NSPLIT + 2 + 16 + 2
    for p in range(NSPLIT):
        k(f's_waitcnt vmcnt({nl - 2*(p+1)})')
        if p == 0:
            unpack(k, A, P, 8)
        else:
            unpack(k, 16, P + 8 * p, 8)
            for i in range(16):
                k(f'v_add_f32 v{A+i}, v{A+i}, v{16+i}')
    T = 80
    rnd(k, list(range(A, A + 16)), T)
    k('s_waitcnt vmcnt(14)')
    unpack(k, 16, 8, 8)
    for i in range(16):
        k(f'v_mul_f32 v{A+i}, v{A+i}, v{160+i}')
    rnd(k, list(range(A, A + 16)), T)
    for i in range(16):
        k(f'v_add_f32 v{16+i}, v{16+i}, v{A+i}')
    for i in range(8):
        k(f'v_cvt_pk_bf16_f32 v{8+i}, v{16+2*i}, v{17+2*i}')
    unpack(k, 16, 8, 8)
    k(f'buffer_store_dwordx4 {vr(8)}, v3, s[44:47], s23 offen')
    k(f'buffer_store_dwordx4 {vr(12)}, v3, s[44:47], s23 offen offset:128')
    k('s_waitcnt vmcnt(2)')
    layernorm_mod(k, 16, 32, 48, 64, T, 0)
    for i in range(8):
        k(f'v_cvt_pk_bf16_f32 v{96+i}, v{32+2*i}, v{33+2*i}')
    unpack(k, 32, 96, 8)
    k(f'buffer_store_dwordx4 {vr(96)}, v3, s[40:43], s23 offen')
    k(f'buffer_store_dwordx4 {vr(100)}, v3, s[40:43], s23 offen offset:128')
    unpack(k, 48, 88, 8)
    k(f'v_mul_f32 v{T+6}, v32, v48')
    for i in range(1, 16):
        k(f'v_fmac_f32 v{T+6}, v{32+i}, v{48+i}')
    for i in range(16):
        k(f'v_mul_f32 v{64+i}, v{32+i}, v{176+i}')
    rnd(k, list(range(64, 80)), T)
    for i in range(16):
        k(f'v_add_f32 v{64+i}, v{64+i}, v{16+i}')
    for i in range(8):
        k(f'v_cvt_pk_bf16_f32 v{104+i}, v{64+2*i}, v{65+2*i}')
    k(f'buffer_store_dwordx4 {vr(104)}, v3, s[36:39], s23 offen')
    k(f'buffer_store_dwordx4 {vr(108)}, v3, s[36:39], s23 offen offset:128')
    row_reduce(k, T + 6, T, 512)
    rnd1(k, T + 6)
    k('s_cmp_lg_u32 s22, 0')
    k('s_cbranch_scc1 fin_end')
    k('v_lshlrev_b32 v1, 2, v0')
    k('s_lshl_b32 s27, s2, 5')
    k('v_cmp_gt_u32 vcc, 8, v0')
    k('s_and_saveexec_b64 s[52:53], vcc')
    k(f'buffer_store_dword v{T+6}, v1, s[48:51], s27 offen')
    k.label('fin_end')
    return k, 256, 320, 1024, 192
```

```python
import sys
import asmgen
from asmgen import *
if 'prof' in sys.argv: asmgen.PROF = True
from k_kv import build_kv
import k_attn
from k_attn import build_attn
from k_small import *
from k_oproj import build_oproj
from k_moe import build_moe1, build_moe2
for a in sys.argv[2:]:
    if '=' in a:
        kk, vv = a.split('=')
        k_attn.OPT[kk] = int(vv) if vv.isdigit() else vv
ks = [build_mod(), build_h(), build_kv(), build_attn(), build_oproj(), build_fin(), build_moe1(), build_moe2()]
build_file(ks, sys.argv[1] if len(sys.argv) > 1 else 'k.s')
```

```python
import re

REG_RE = re.compile(r'\b([vas])\[(\d+):(\d+)\]|\b([vas])(\d+)\b|\b(vcc_lo|vcc_hi|vcc|exec|m0|scc)\b')

TRANS = ('v_exp_f32', 'v_log_f32', 'v_rcp_f32', 'v_rsq_f32', 'v_sqrt_f32', 'v_sin_f32', 'v_cos_f32',
         'v_rcp_iflag_f32')


def regs_of(op):
    out = []
    for m in REG_RE.finditer(op):
        if m.group(1):
            out += [(m.group(1), i) for i in range(int(m.group(2)), int(m.group(3)) + 1)]
        elif m.group(4):
            out.append((m.group(4), int(m.group(5))))
        else:
            n = m.group(6)
            if n.startswith('vcc'):
                out += [('s', 106), ('s', 107)]
            elif n == 'exec':
                out += [('s', 126), ('s', 127)]
            elif n == 'm0':
                out.append(('s', 124))
    return out


def split_ops(s):
    ops, depth, cur = [], 0, ''
    for ch in s:
        if ch == '[':
            depth += 1
        elif ch == ']':
            depth -= 1
        if ch == ',' and depth == 0:
            ops.append(cur.strip())
            cur = ''
        else:
            cur += ch
    if cur.strip():
        ops.append(cur.strip())
    return ops


class Ins:
    __slots__ = ('text', 'mn', 'kind', 'wr', 'rd', 'a', 'b', 'c', 'passes', 'dpp', 'target', 'nopn',
                 'label', 'wide', 'lds', 'data')

    def __init__(self, text):
        self.text = text
        self.label = None
        t = text.split(';')[0].strip()
        self.wr, self.rd = set(), set()
        self.a = self.b = self.c = set()
        self.passes = 0
        self.dpp = False
        self.target = None
        self.nopn = 1
        self.wide = False
        self.lds = False
        self.data = set()
        if t.endswith(':'):
            self.kind = 'label'
            self.mn = ''
            self.label = t[:-1]
            self.nopn = 0
            return
        if not t or t.startswith('.'):
            self.kind = 'none'
            self.mn = ''
            self.nopn = 0
            return
        parts = t.split(None, 1)
        mn = parts[0]
        self.mn = mn
        rest = parts[1] if len(parts) > 1 else ''
        ops = split_ops(rest)
        R = lambda i: set(regs_of(ops[i])) if i < len(ops) else set()
        if mn.startswith('v_mfma'):
            self.kind = 'mfma'
            self.wr = R(0)
            self.a, self.b, self.c = R(1), R(2), R(3)
            self.rd = self.a | self.b | self.c
            self.passes = 8 if '32x32' in mn else 4
        elif mn.startswith('v_'):
            self.kind = 'trans' if mn.replace('_e32', '').replace('_e64', '') in TRANS else 'valu'
            self.dpp = ('row_' in rest or 'quad_perm' in rest or 'wave_' in rest or '_dpp' in mn)
            if mn.startswith('v_permlane') and 'swap' in mn or mn.startswith('v_swap'):
                self.wr = R(0) | R(1)
                self.rd = R(0) | R(1)
                self.dpp = True
            elif mn.startswith(('v_add_co', 'v_sub_co', 'v_addc_co', 'v_subb_co', 'v_subrev_co')) or mn.startswith('v_div_scale') or mn.startswith('v_mad_u64'):
                self.wr = R(0) | R(1)
                for i in range(2, len(ops)):
                    self.rd |= R(i)
            else:
                self.wr = R(0)
                for i in range(1, len(ops)):
                    self.rd |= R(i)
                if mn.startswith(('v_fmac', 'v_mac', 'v_dot2c', 'v_pk_fmac', 'v_dot4c')) or self.dpp:
                    self.rd |= R(0)
                if mn.startswith('v_cndmask') and len(ops) == 3:
                    self.rd |= {('s', 106), ('s', 107)}
                if mn.startswith('v_cmpx'):
                    self.wr |= {('s', 126), ('s', 127)}
                if mn.startswith('v_writelane'):
                    self.rd |= R(0)
        elif mn.startswith('ds_'):
            self.kind = 'ds'
            if mn.startswith(('ds_read', 'ds_bpermute', 'ds_permute', 'ds_swizzle')) or '_rtn' in mn:
                self.wr = R(0)
                for i in range(1, len(ops)):
                    self.rd |= R(i)
            else:
                for i in range(len(ops)):
                    self.rd |= R(i)
                for i in range(1, len(ops)):
                    self.data |= R(i)
                self.wide = ('b128' in mn or 'b96' in mn or 'write2_b64' in mn)
        elif mn.startswith(('buffer_', 'global_', 'flat_')):
            self.kind = 'vmem'
            toks = rest.replace(',', ' ').split()
            self.lds = 'lds' in toks
            if mn in ('buffer_wbl2', 'buffer_inv'):
                pass
            elif 'load' in mn and not self.lds:
                self.wr = R(0)
                for i in range(1, len(ops)):
                    self.rd |= R(i)
            elif 'load' in mn:
                for i in range(len(ops)):
                    self.rd |= R(i)
                self.rd.add(('s', 124))
            else:
                for i in range(len(ops)):
                    self.rd |= R(i)
                di = 0 if mn.startswith('buffer_') else 1
                if 'atomic' in mn and 'sc0' in toks:
                    if mn.startswith('buffer_'):
                        self.wr = R(0)
                    else:
                        self.wr = R(0)
                        di = 2
                self.data = R(di)
                self.wide = ('x4' in mn or 'x3' in mn)
        elif mn.startswith('s_'):
            self.kind = 'salu'
            if mn == 's_nop':
                self.nopn = int(ops[0], 0) + 1
            elif mn.startswith(('s_cbranch', 's_branch')):
                self.kind = 'branch'
                self.target = ops[0]
            elif mn == 's_endpgm':
                self.kind = 'end'
            elif mn.startswith(('s_waitcnt', 's_barrier', 's_setprio', 's_sleep', 's_sethalt')):
                pass
            elif mn.startswith(('s_cmp', 's_bitcmp')):
                for i in range(len(ops)):
                    self.rd |= R(i)
            elif mn.startswith(('s_load', 's_buffer_load', 's_memtime', 's_memrealtime')):
                self.kind = 'smem'
                self.wr = R(0)
                for i in range(1, len(ops)):
                    self.rd |= R(i)
            else:
                self.wr = R(0)
                for i in range(1, len(ops)):
                    self.rd |= R(i)
                if 'saveexec' in mn:
                    self.wr |= {('s', 126), ('s', 127)}
        else:
            raise ValueError('unknown instruction ' + text)


def vregs(s):
    return {r for r in s if r[0] in 'va'}


def sregs(s):
    return {r for r in s if r[0] == 's'}


def need(p, c):
    n = 0
    pk, ck = p.kind, c.kind
    pvalu = pk in ('valu', 'trans')
    cvalu = ck in ('valu', 'trans')
    if pvalu:
        pw = vregs(p.wr)
        ps = sregs(p.wr)
        if ck == 'mfma' and pw & c.rd:
            n = max(n, 2)
        if pk == 'trans' and (cvalu or ck == 'mfma') and pw & c.rd:
            n = max(n, 1)
        if pk == 'trans' and ck in ('vmem', 'ds') and pw & c.rd:
            n = max(n, 1)
        if cvalu and c.dpp and pw & c.rd:
            n = max(n, 2)
        if cvalu and c.mn.startswith(('v_readfirstlane', 'v_readlane')) and pw & c.rd:
            n = max(n, 1)
        if ps:
            if cvalu and ps & c.rd:
                n = max(n, 4 if c.mn.startswith(('v_readlane', 'v_writelane')) else 2)
            if ck == 'vmem' and ps & c.rd:
                n = max(n, 5)
            if cvalu and c.dpp and (('s', 126) in ps):
                n = max(n, 5)
            if ck in ('salu', 'branch', 'smem') and ps & c.rd:
                n = max(n, 1)
    if pk == 'mfma':
        big = p.passes == 8
        if ck == 'mfma':
            if p.wr & (c.a | c.b):
                n = max(n, 12 if big else 8)
            if p.wr & c.c:
                if not (p.wr == c.c and p.passes == c.passes):
                    n = max(n, 10 if big else 6)
            if p.wr & c.wr and not (p.wr == c.wr):
                n = max(n, 10 if big else 6)
        elif cvalu or ck in ('vmem', 'ds'):
            if p.wr & (c.rd | c.wr):
                n = max(n, 12 if big else 8)
            if cvalu and p.c & c.wr:
                n = max(n, 7 if big else 3)
    if pk in ('vmem', 'ds') and p.wide and cvalu and p.data & c.wr:
        n = max(n, 2)
    if pk == 'salu' and ('s', 124) in p.wr and (ck == 'ds' or (ck == 'vmem' and c.lds)):
        n = max(n, 1)
    return n


MAXW = 12


class Kern:
    def __init__(self, name):
        self.name = name
        self.ins = []
        self.nl = 0

    def __call__(self, text):
        for line in text.split('\n'):
            line = line.strip()
            if line:
                self.ins.append(Ins(line))

    def label(self, name):
        self.ins.append(Ins(name + ':'))

    def newlabel(self, p='L'):
        self.nl += 1
        return f'{self.name}_{p}{self.nl}'

    def fix(self):
        ins = self.ins
        total_nops = 0
        i = 0
        while i < len(ins):
            c = ins[i]
            if c.kind in ('label', 'none'):
                i += 1
                continue
            labels = {}
            for j, x in enumerate(ins):
                if x.kind == 'label':
                    labels[x.label] = j
            break
        i = 0
        while i < len(ins):
            c = ins[i]
            if c.kind in ('label', 'none'):
                i += 1
                continue
            short = self._short(i)
            if short > 0:
                ins.insert(i, Ins(f's_nop {short - 1}'))
                total_nops += short
                i += 1
            i += 1
        return total_nops

    def _srcs(self):
        d = {}
        for j, x in enumerate(self.ins):
            if x.kind == 'branch':
                d.setdefault(x.target, []).append(j)
        return d

    def _short(self, i):
        ins = self.ins
        c = ins[i]
        srcs = self._srcs_cache if hasattr(self, '_srcs_cache') and self._srcs_len == len(ins) else None
        if srcs is None:
            srcs = self._srcs()
            self._srcs_cache = srcs
            self._srcs_len = len(ins)
        worst = 0
        stack = [(i - 1, 0)]
        seen = {}
        while stack:
            j, w = stack.pop()
            while j >= 0 and w < MAXW:
                if seen.get(j, 99) <= w:
                    break
                seen[j] = w
                p = ins[j]
                if p.kind == 'label':
                    for s in srcs.get(p.label, []):
                        stack.append((s, w))
                    j -= 1
                    continue
                if p.kind == 'none':
                    j -= 1
                    continue
                if p.kind == 'end' or (p.kind == 'branch' and p.mn == 's_branch' and False):
                    break
                nd = need(p, c)
                if nd > w:
                    worst = max(worst, nd - w)
                w += p.nopn
                j -= 1
        return worst

    def text(self):
        out = []
        for x in self.ins:
            if x.kind == 'label':
                out.append(x.text)
            else:
                out.append('    ' + x.text)
        return '\n'.join(out)


HEADER_FILE = 'adaLN_cond__compressed_kv_cla__moe_arch_mod__prompt.s.ref'


def build_file(kernels, path):
    hdr = []
    for line in open(HEADER_FILE).read().split('\n'):
        if line.startswith('; @launch'):
            break
        hdr.append(line)
    out = list(hdr)
    for k, grid, block, lds, nv in kernels:
        out.append(f'; @launch kernel={k.name}_kernel grid=({grid},1,1) block=({block},1,1) lds={lds}')
    out.append('.amdgcn_target "amdgcn-amd-amdhsa--gfx950"')
    out.append('.text')
    seen = set()
    for k, grid, block, lds, nv in kernels:
        if k.name in seen:
            continue
        seen.add(k.name)
        n = k.fix()
        out.append(f'.globl {k.name}_kernel')
        out.append('.p2align 8')
        out.append(f'.type {k.name}_kernel,@function')
        out.append(f'{k.name}_kernel:')
        out.append(k.text())
        out.append('    s_endpgm')
    out.append('.section .rodata,"a"')
    seen = set()
    for k, grid, block, lds, nv in kernels:
        if k.name in seen:
            continue
        seen.add(k.name)
        if nv > 256:
            acc = 256
            tot = nv
        else:
            acc = (nv + 3) // 4 * 4
            tot = nv
        out.append('.p2align 6')
        out.append(f'.amdhsa_kernel {k.name}_kernel')
        out.append(f'  .amdhsa_next_free_vgpr {tot}')
        out.append('  .amdhsa_next_free_sgpr 102')
        out.append(f'  .amdhsa_accum_offset {acc}')
        out.append('  .amdhsa_group_segment_fixed_size 0')
        out.append('  .amdhsa_kernarg_size 128')
        out.append('  .amdhsa_user_sgpr_count 2')
        out.append('  .amdhsa_user_sgpr_kernarg_segment_ptr 1')
        out.append('  .amdhsa_system_sgpr_workgroup_id_x 1')
        out.append('.end_amdhsa_kernel')
    open(path, 'w').write('\n'.join(out) + '\n')


ARG = dict(x=0, ckv=8, wq=16, wuk=24, wuv=32, wo=40, bx=48, wr=56, wg=64, wu=72, wd=80, c=88, wmod=96,
           out=104, dbg=112, ws=120)
SIZE = dict(x=2048 * 640 * 2, ckv=2048 * 512 * 2, wq=640 * 4096 * 2, wuk=512 * 4096 * 2, wuv=512 * 4096 * 2,
            wo=4096 * 640 * 2, wr=1280, wg=640 * 1728 * 2, wu=640 * 1728 * 2, wd=1728 * 640 * 2, c=1280,
            wmod=640 * 3840 * 2, out=2048 * 640 * 2, dbg=256, ws=268435456)

WS = dict(
    kv=0,
    ctx=32 << 20,
    h=48 << 20,
    part=52 << 20,
    modp=80 << 20,
    h2=81 << 20,
    x1=84 << 20,
    r=87 << 20,
    moe=88 << 20,
)
import os
for _k in WS:
    WS[_k] += int(os.environ.get('WSOFF', '0')) << 20


def srd(k, d, base, nbytes, off=0):
    if off:
        k(f's_add_u32 s{d}, s{base}, {off}')
        k(f's_addc_u32 s{d+1}, s{base+1}, 0')
    else:
        k(f's_mov_b32 s{d}, s{base}')
        k(f's_mov_b32 s{d+1}, s{base+1}')
    k(f's_mov_b32 s{d+2}, {nbytes}')
    k(f's_mov_b32 s{d+3}, 0x00020000')


PROF = False
PROF_WS = 200 << 20


def tstamp(k, idx):
    if not PROF:
        return
    k(f's_memtime s[{70+2*idx}:{71+2*idx}]')


def tdump(k, n, wsbase, kid, waves_shift=3):
    if not PROF:
        return
    k('s_waitcnt vmcnt(0) lgkmcnt(0)')
    k(f's_memtime s[{70+2*n}:{71+2*n}]')
    k('s_memrealtime s[60:61]')
    k('s_waitcnt lgkmcnt(0)')
    k(f's_add_u32 s64, s{wsbase}, {PROF_WS + kid * (1 << 20)}')
    k(f's_addc_u32 s65, s{wsbase+1}, 0')
    k('s_mov_b32 s66, 0x100000')
    k('s_mov_b32 s67, 0x00020000')
    k(f's_lshl_b32 s62, s2, {waves_shift}')
    k('s_add_u32 s62, s62, s22')
    k('s_lshl_b32 s62, s62, 6')
    k('v_mov_b32 v0, 0')
    for i in range(n + 1):
        k(f'v_mov_b32 v1, s{70+2*i}')
        k(f'buffer_store_dword v1, v0, s[64:67], s62 offen offset:{4*i}')
    k('v_mov_b32 v1, s60')
    k(f'buffer_store_dword v1, v0, s[64:67], s62 offen offset:60')
    k('v_mov_b32 v1, s68')
    k(f'buffer_store_dword v1, v0, s[64:67], s62 offen offset:56')


def tstart(k):
    if not PROF:
        return
    k('s_memrealtime s[68:69]')
    k('s_memtime s[70:71]')
```

```python
from asmgen import *
import asmgen
import math
import struct

OPT = dict(rate=2, ntl='mw', pfw=2)
OOB = 0x40000000
NPRE = 4
BIAS = 60.0
QSCALE = math.log2(math.e) / math.sqrt(128.0)


def f32hex(x):
    return hex(struct.unpack('<I', struct.pack('<f', x))[0])


def vr(b, n=4):
    return f'v[{b}:{b+n-1}]'


SX, SW, SQ, SWS, SK2, SD, SXI, SC, SM = 24, 28, 32, 36, 40, 44, 48, 52, 56
sG, sRQ, sHEAD, sISV, sTQ, sPAIR, sCB, sT2, sL, sXB, sWB, sT, sKVS, sHROW, sADD = 4, 5, 6, 7, 8, 9, 10, 11, 12, 13, 14, 15, 16, 17, 18
sPASS, sH0, sH1, sWAVE, sBLK = 19, 20, 21, 22, 23
V_XD, V_WD, V_XR, V_WR = 4, 6, 8, 14
V_L16, V_L4, V_AT, V_PL = 20, 21, 22, 23
V_N = 24
V_POLL, V_ONE, V_PK = 29, 30, 31
sPASS0 = 60
PK = 48
XF = [64, 80]
ACC = 96
V_QR = 32
V_HV = 14
HR = 192
WQ = [128, 160]
QA = 64


def wreg(ks, nb):
    return (192 + ks * 8 if ks < 8 else 128 + (ks - 8) * 8) + nb * 4


def NTM():
    return ' nt' if 'm' in OPT.get('ntl', '') else ''


def srdr(b):
    return f's[{b}:{b+3}]'


class Tracker:
    def __init__(self, k):
        self.k = k
        self.issued = []

    def vm(self, tag, text):
        self.k(text)
        self.issued.append(tag)

    def wait(self, pred):
        last = -1
        for idx, t in enumerate(self.issued):
            if pred(t):
                last = idx
        assert last >= 0
        n = len(self.issued) - 1 - last
        assert n <= 63
        self.k(f's_waitcnt vmcnt({n})')


def items_list():
    it = []
    for S in range(8):
        it += [('x', S), ('w', S)]
    it += [('x', S) for S in range(8, 32)]
    it += [('q', S) for S in range(10)]
    return it


def bar_steps():
    return [s for s in range(1, 64, 2) if s < 16 or s % 4 == 3]


def ring_plan():
    it = items_list()
    slot, avail = {}, {}
    for i in range(9):
        slot[i] = i
        avail[i] = -1
    nxt = 9
    bars = bar_steps()
    for S in range(32):
        b = min(x for x in bars if x >= 2 * S + 1)
        free = [slot[it.index(('x', S))]]
        if S < 8:
            free.append(slot[it.index(('w', S))])
        if S == 15:
            free.append(9)
        for f in free:
            if nxt < len(it):
                slot[nxt] = f
                avail[nxt] = b
                nxt += 1
    assert nxt == len(it)
    perm = {slot[40 + q]: q for q in range(10)}
    assert len(perm) == 10
    slot = {i: perm[s] for i, s in slot.items()}
    return it, slot, avail, perm[9]


def wavesum(side, r, t):
    for sh in (1, 2, 4, 8):
        side.append(f'v_add_f32_dpp v{r}, v{r}, v{r} row_ror:{sh} row_mask:0xf bank_mask:0xf')
    for w in ('16', '32'):
        side.append(f'v_mov_b32 v{t}, v{r}')
        side.append(f'v_permlane{w}_swap_b32 v{r}, v{t}')
        side.append(f'v_add_f32 v{r}, v{r}, v{t}')


def rnd1(side, r):
    side.append(f'v_cvt_pk_bf16_f32 v{r}, v{r}, v{r}')
    side.append(f'v_lshlrev_b32 v{r}, 16, v{r}')


FLG = WS['modp'] + 0x10000


class Spins:
    def __init__(self, k):
        self.k = k
        self.l = []

    def test(self, kind, target, spass):
        if kind == 'cnt':
            out = [f'v_readfirstlane_b32 s3, v{V_POLL}']
            if spass:
                out.append(f's_or_b32 s3, s3, s{spass}')
            out.append(f's_cmp_ge_u32 s3, {target}')
        else:
            out = [f'v_cmp_le_u32 vcc, {target}, v{V_POLL}']
            out.append(f's_or_b32 s3, vcc_lo, s{spass}' if spass else 's_mov_b32 s3, vcc_lo')
            out += [f's_and_b32 s3, s3, {kind}', f's_cmp_eq_u32 s3, {kind}']
        return out

    def load(self, kind, soff, va):
        if kind == 'cnt':
            return f'buffer_load_dword v{V_POLL}, v{va}, {srdr(SD)}, 0 offen sc1'
        return f'buffer_load_dword v{V_POLL}, v{va}, {srdr(SWS)}, {soff} offen sc1'

    def check(self, kind, soff, target, va, spass):
        k = self.k
        sp, back = k.newlabel('spin'), k.newlabel('back')
        out = self.test(kind, target, spass) + [f's_cbranch_scc0 {sp}', back + ':']
        self.l.append((sp, back, kind, soff, target, va))
        return out

    def emit(self):
        k = self.k
        for sp, back, kind, soff, target, va in self.l:
            k.label(sp)
            k(f's_mov_b32 s{sT2}, 0')
            lp = k.newlabel('lp')
            k.label(lp)
            k(f's_sleep {OPT.get("slp", 4)}')
            k(self.load(kind, soff, va))
            k('s_waitcnt vmcnt(0)')
            k(f's_add_u32 s{sT2}, s{sT2}, 1')
            k(f's_cmp_ge_u32 s{sT2}, 0x4000')
            k(f's_cbranch_scc1 {back}')
            for x in self.test(kind, target, None):
                k(x)
            k(f's_cbranch_scc0 {lp}')
            k(f's_branch {back}')


def prologue(k, tr, it, slot, scr):
    k(f's_load_dwordx8 s[76:83], s[0:1], 0')
    k(f's_load_dwordx2 s[84:85], s[0:1], 32')
    k(f's_load_dwordx8 s[88:95], s[0:1], 88')
    k(f's_load_dwordx2 s[96:97], s[0:1], 120')
    k('v_lshrrev_b32 v1, 6, v0')
    k(f'v_readfirstlane_b32 s{sWAVE}, v1')
    k('v_lshrrev_b32 v1, 1, v0')
    k('v_and_b32 v2, 1, v0')
    k('v_lshlrev_b32 v184, 1, v1')
    k('v_mul_u32_u24 v185, 7680, v1')
    k('v_lshl_add_u32 v185, v2, 4, v185')
    k('v_lshrrev_b32 v1, 4, v0')
    k('v_lshl_add_u32 v1, v1, 1, v2')
    k('v_lshlrev_b32 v1, 5, v1')
    k(f'v_add_u32 v163, {scr*16384}, v1')
    k('v_and_b32 v0, 63, v0')
    k(f's_lshr_b32 s{sG}, s{sWAVE}, 2')
    k(f's_and_b32 s{sRQ}, s{sWAVE}, 3')
    k(f's_and_b32 s3, s2, 7')
    k(f's_lshr_b32 s{sT}, s2, 3')
    k(f's_lshl_b32 s{sCB}, s3, 5')
    k(f's_add_u32 s{sCB}, s{sCB}, s{sT}')
    k(f's_lshl_b32 s{sHEAD}, s3, 1')
    k(f's_and_b32 s3, s{sT}, 1')
    k(f's_add_u32 s{sHEAD}, s{sHEAD}, s3')
    k(f's_and_b32 s3, s{sT}, 2')
    k(f's_lshl_b32 s3, s3, 3')
    k(f's_add_u32 s{sHEAD}, s{sHEAD}, s3')
    k(f's_lshr_b32 s{sPAIR}, s{sT}, 2')
    k(f's_and_b32 s{sISV}, s{sPAIR}, 1')
    k(f's_lshr_b32 s{sTQ}, s{sT}, 3')
    k(f's_lshl_b32 s{sL}, s{sWAVE}, 11')
    k(f's_lshl_b32 s{sXB}, s{sTQ}, 17')
    k(f's_lshl_b32 s3, s{sWAVE}, 14')
    k(f's_add_u32 s{sXB}, s{sXB}, s3')
    k(f's_lshl_b32 s{sWB}, s{sWAVE}, 15')
    k(f's_lshl_b32 s3, s{sHEAD}, 8')
    k(f's_add_u32 s{sWB}, s{sWB}, s3')
    k('v_lshrrev_b32 v1, 3, v0')
    k('v_lshlrev_b32 v1, 10, v1')
    k('v_and_b32 v2, 7, v0')
    k('v_lshrrev_b32 v3, 4, v0')
    k('v_xor_b32 v2, v2, v3')
    k(f'v_lshl_or_b32 v{V_XD}, v2, 4, v1')
    k(f'v_xor_b32 v{V_XD+1}, 64, v{V_XD}')
    k(f'v_add_u32 v{V_XD+1}, {8192-1024}, v{V_XD+1}')
    k('v_and_b32 v2, 15, v0')
    k('v_lshlrev_b32 v1, 1, v3')
    k('v_xor_b32 v2, v2, v1')
    k(f's_lshl_b32 s3, s{sWAVE}, 2')
    k('s_and_b32 s3, s3, 8')
    k('v_xor_b32 v2, s3, v2')
    k('v_lshlrev_b32 v1, 13, v3')
    k(f'v_lshl_or_b32 v{V_WD}, v2, 4, v1')
    k(f'v_add_u32 v{V_WD+1}, {32*8192-1024}, v{V_WD}')
    k(f'v_lshlrev_b32 v{V_L16}, 4, v0')
    k(f'v_lshlrev_b32 v{V_L4}, 2, v0')
    k(f's_lshl_b32 s{sHROW}, s2, 3')
    k(f's_add_u32 s{sHROW}, s{sHROW}, s{sWAVE}')
    k(f's_mul_i32 s{sHROW}, s{sHROW}, 1280')
    k(f's_lshl_b32 s{sT2}, s{sCB}, 5')
    k('s_waitcnt lgkmcnt(0)')
    srd(k, SX, 78, SIZE['ckv'])
    k(f's_cmp_eq_u32 s{sISV}, 0')
    k(f's_cselect_b32 s{SW}, s82, s84')
    k(f's_cselect_b32 s{SW+1}, s83, s85')
    k(f's_mov_b32 s{SW+2}, {SIZE["wuk"]}')
    k(f's_mov_b32 s{SW+3}, 0x00020000')
    srd(k, SC, 88, SIZE['c'])
    srd(k, SM, 90, SIZE['wmod'])
    srd(k, SXI, 76, SIZE['x'])
    for p in range(3):
        tr.vm('c', f'buffer_load_ushort v{160+p}, v184, {srdr(SC)}, 0 offen offset:{p*512}')
    for p in range(3):
        k(f's_add_u32 s{sT}, s{sT2}, {p*256*7680}')
        tr.vm(('m', p), f'buffer_load_dwordx4 {vr(164+4*p)}, v185, {srdr(SM)}, s{sT} offen{NTM()}')
    tr.vm('xi', f'buffer_load_dwordx4 {vr(V_N)}, v{V_L16}, {srdr(SXI)}, s{sHROW} offen{NTM()}')
    tr.vm('xi', f'buffer_load_dword v{V_N+4}, v{V_L4}, {srdr(SXI)}, s{sHROW} offen offset:1024{NTM()}')
    for i in range(NPRE):
        for g in dma_item(k, tr, it, slot, i):
            g()
    srd(k, SQ, 80, SIZE['wq'])
    k('v_lshlrev_b32 v1, 7, v0')
    k(f'v_cmp_gt_u32 vcc, {OPT.get("npx", 32)}, v0')
    k(f'v_mov_b32 v2, {OOB}')
    k(f'v_cndmask_b32 v{PK+2}, v2, v1, vcc')
    k('v_lshrrev_b32 v1, 1, v0')
    k('v_lshlrev_b32 v1, 13, v1')
    k(f'v_and_b32 v{PK+3}, 1, v0')
    k(f'v_lshl_add_u32 v1, v{PK+3}, 7, v1')
    k('v_cmp_gt_u32 vcc, 20, v0')
    k(f'v_cndmask_b32 v{PK+3}, v2, v1, vcc')
    if OPT.get('pfw', 1):
        k('v_lshrrev_b32 v1, 2, v0')
        k('v_lshlrev_b32 v1, 19, v1')
        k(f'v_bfe_u32 v{PK+4}, v0, 1, 1')
        k(f'v_lshl_add_u32 v1, v{PK+4}, 13, v1')
        k(f'v_and_b32 v{PK+4}, 1, v0')
        k(f'v_lshl_add_u32 v1, v{PK+4}, 7, v1')
        k('v_cmp_gt_u32 vcc, 24, v0')
        k(f'v_cndmask_b32 v1, v2, v1, vcc')
        k(f's_lshl_b32 s3, s{sTQ}, 3')
        k(f's_add_u32 s3, s3, s{sWAVE}')
        k(f's_lshl_b32 s3, s3, 14')
        k(f's_lshl_b32 s{sT}, s{sHEAD}, 8')
        k(f's_add_u32 s3, s3, s{sT}')
        k(f's_add_u32 s3, s3, {2*64*8192}')
        tr.vm('pf', f'buffer_load_dword v{PK+4}, v1, {srdr(SW)}, s3 offen{" nt" if OPT.get("pfw", 1) == 2 else ""}')
    if OPT.get('pfa', 1):
        k('s_lshr_b32 s3, s2, 3')
        k('s_lshl_b32 s3, s3, 3')
        k(f's_add_u32 s3, s3, s{sWAVE}')
        k(f's_lshl_b32 s3, s3, 12')
        tr.vm('pf', f'buffer_load_dword v{PK+5}, v{PK+2}, {srdr(SX)}, s3 offen')
    srd(k, SWS, 96, SIZE['ws'])
    srd(k, SK2, 96, SIZE['ws'])
    srd(k, SD, 94, 256)
    k('v_and_b32 v1, 15, v0')
    k('v_lshrrev_b32 v2, 1, v1')
    k('v_xor_b32 v2, v2, v3')
    k(f's_lshl_b32 s3, s{sG}, 13')
    k('v_lshlrev_b32 v1, 7, v1')
    k('v_add_u32 v1, s3, v1')
    k(f'v_lshl_or_b32 v{V_XR}, v2, 4, v1')
    k(f'v_xor_b32 v{V_XR+1}, 64, v{V_XR}')
    for w in (1, 2):
        for a in range(2):
            k(f'v_add_u32 v{V_XR+2*w+a}, {w*65536}, v{V_XR+a}')
    k('v_bfe_u32 v1, v0, 2, 2')
    k('v_lshlrev_b32 v2, 8, v1')
    k('v_lshl_add_u32 v2, v3, 12, v2')
    k('v_and_b32 v47, 1, v3')
    k('v_lshl_add_u32 v1, v47, 2, v1')
    k('v_lshlrev_b32 v1, 1, v1')
    k('v_bfe_u32 v47, v0, 1, 1')
    k('v_xor_b32 v1, v1, v47')
    k('v_lshl_add_u32 v2, v1, 4, v2')
    k('v_and_b32 v1, 1, v0')
    k('v_lshl_add_u32 v47, v1, 3, v2')
    k(f's_lshl_b32 s3, s{sRQ}, 6')
    k(f'v_xor_b32 v{V_WR}, s3, v47')
    k(f'v_xor_b32 v{V_WR+1}, 32, v{V_WR}')
    for w in (1, 2):
        for a in range(2):
            k(f'v_add_u32 v{V_WR+2*w+a}, {w*65536}, v{V_WR+a}')
    k(f's_mov_b32 s{sT}, {OOB}')
    k(f's_cmp_eq_u32 s{sWAVE}, 0')
    k(f's_cselect_b32 s3, 0, s{sT}')
    k(f's_cselect_b32 s{sPASS0}, 0, 0xffff')
    k(f'v_mov_b32 v1, s{sT}')
    k('v_cmp_eq_u32 vcc, 0, v0')
    k(f'v_mov_b32 v2, s3')
    k(f'v_cndmask_b32 v{V_AT}, v1, v2, vcc')
    k(f'v_add_u32 v2, s3, v{V_L4}')
    k('v_cmp_gt_u32 vcc, 16, v0')
    k(f'v_cndmask_b32 v{V_PK}, v1, v2, vcc')
    k(f's_cmp_eq_u32 s{sRQ}, 0')
    k(f's_cselect_b32 s3, 0, s{sT}')
    k(f's_cselect_b32 s{sPASS}, 0, 0xffff')
    k(f'v_add_u32 v2, s3, v{V_L4}')
    k(f'v_cndmask_b32 v{V_PL}, v1, v2, vcc')
    k(f'v_mov_b32 v{V_ONE}, 1')
    k(f'v_mov_b32 v35, 0')
    k(f's_lshl_b32 s3, s{sCB}, 8')
    k(f's_add_u32 s3, s3, {FLG}')
    k(f's_cmp_lt_u32 s{sCB}, 48')
    k(f's_cselect_b32 s3, s3, s{sT}')
    tr.vm('ms', f'buffer_store_dword v35, v{V_PK}, {srdr(SWS)}, s3 offen sc1')
    k(f's_cmp_eq_u32 s{sWAVE}, 0')
    k(f's_cselect_b32 s3, 0, s{sT}')
    k(f's_cmp_lt_u32 s{sCB}, 240')
    k(f's_cselect_b32 s3, s3, s{sT}')
    k('v_lshlrev_b32 v2, 1, v0')
    k('v_add_u32 v2, s3, v2')
    k('v_and_b32 v33, 0x31, v0')
    k('v_cmp_eq_u32 vcc, 0, v33')
    k('v_cndmask_b32 v33, v1, v2, vcc')
    k('v_and_b32 v1, 15, v0')
    k('v_lshlrev_b32 v1, 2, v1')
    k('v_lshl_add_u32 v1, v3, 9, v1')
    k(f'v_add_u32 v32, {scr*16384}, v1')
    k(f's_sub_u32 s3, s{sCB}, 40')
    k(f's_cmp_lt_u32 s3, 40')
    k(f's_cselect_b32 s{sADD}, 1.0, 0')
    k(f's_sub_u32 s3, s{sCB}, 160')
    k(f's_cmp_lt_u32 s3, 40')
    k(f's_cselect_b32 s{sADD}, 1.0, s{sADD}')
    k(f's_lshl_b32 s{sKVS}, s{sHEAD}, 20')
    k(f's_lshl_b32 s3, s{sTQ}, 16')
    k(f's_add_u32 s{sKVS}, s{sKVS}, s3')
    k(f's_lshl_b32 s3, s{sG}, 15')
    k(f's_add_u32 s{sKVS}, s{sKVS}, s3')
    k(f's_lshl_b32 s3, s{sRQ}, 10')
    k(f's_lshl_b32 s3, s3, s{sISV}')
    k(f's_add_u32 s{sKVS}, s{sKVS}, s3')
    k(f's_lshl_b32 s3, s{sISV}, 14')
    k(f's_add_u32 s{sKVS}, s{sKVS}, s3')
    k(f's_sub_u32 s3, 15, s{sPAIR}')
    k(f's_cmp_eq_u32 s{sG}, 0')
    k(f's_cselect_b32 s{sBLK}, s3, s{sPAIR}')
    k(f's_lshl_b32 s3, s{sBLK}, 2')
    k(f's_add_u32 s3, s3, s{sRQ}')
    k(f's_mul_i32 s3, s3, {2*20480}')
    k(f's_add_u32 s{sH0}, s3, {WS["h"]}')
    k(f's_lshr_b32 s3, s2, 1')
    k(f's_mul_i32 s{sH1}, s3, 20480')
    k(f's_and_b32 s3, s2, 1')
    k(f's_lshl_b32 s3, s3, 7')
    k(f's_add_u32 s{sH1}, s{sH1}, s3')
    k(f's_add_u32 s{sH1}, s{sH1}, {WS["h"]}')
    for x in pre_stream(k, tr):
        x() if callable(x) else k(x)
    k('s_waitcnt lgkmcnt(0)')


def dma_item(k, tr, it, slot, i):
    typ, S = it[i]
    if typ == 'x':
        base, off, s, v = sXB, (S // 8) * 4 * 131072 + (S % 8) * 128, SX, V_XD
    else:
        base, off, s, v = sWB, S * 64 * 8192, (SW if typ == 'w' else SQ), V_WD

    nt = ' nt' if typ in OPT.get('ntl', '') else ''
    if OPT.get('hotx') and typ == 'x':
        off = 0
    if OPT.get('nold') and i >= 9:
        off = OOB

    if OPT.get('skipdma') and i >= NPRE and (OPT['skipdma'] == 1 or typ == 'w'):
        return [lambda: None, lambda: None]

    def p0():
        k(f's_add_u32 m0, s{sL}, {slot[i]*16384}')
        k(f's_add_u32 s{sT}, s{base}, {off}')
        tr.vm(('it', i), f'buffer_load_dwordx4 v{v}, {srdr(s)}, s{sT} offen{nt} lds')

    def p1():
        tr.vm(('it', i), f'buffer_load_dwordx4 v{v+1}, {srdr(s)}, s{sT} offen offset:1024{nt} lds')
    return [p0, p1]


def pre_stream(k, tr):
    s = []
    s.append(lambda: tr.wait(lambda t: t == 'c'))
    s.append(f's_mov_b32 s3, {f32hex(-1.4426950408889634)}')
    for p in range(3):
        c, t = 160 + p, 184 + p
        s += [f'v_lshlrev_b32 v{c}, 16, v{c}', f'v_mul_f32 v{t}, s3, v{c}', f'v_exp_f32 v{t}, v{t}']
    for p in range(3):
        c, t = 160 + p, 184 + p
        s += [f'v_add_f32 v{t}, 1.0, v{t}', f'v_rcp_f32 v{t}, v{t}']
    for p in range(3):
        c, t = 160 + p, 184 + p
        s += [f'v_mul_f32 v{c}, v{c}, v{t}']
        rnd1(s, c)
    for p in range(3):
        s.append(lambda p=p: tr.wait(lambda t: t == ('m', p)))
        for i in range(4):
            w = 164 + 4 * p + i
            s += [f'v_lshlrev_b32 v{184+2*i}, 16, v{w}', f'v_and_b32 v{185+2*i}, 0xffff0000, v{w}']
        for e in range(8):
            s.append(f'v_mul_f32 v{176+e}, v{160+p}, v{184+e}' if p == 0 else f'v_fmac_f32 v{176+e}, v{160+p}, v{184+e}')
    for sh in (2, 4, 8):
        for e in range(8):
            s.append(f'v_add_f32_dpp v{176+e}, v{176+e}, v{176+e} row_ror:{sh} row_mask:0xf bank_mask:0xf')
    s += [f'ds_write_b128 v163, {vr(176)}', f'ds_write_b128 v163, {vr(180)} offset:16']
    s += ['s_waitcnt lgkmcnt(0)', 's_barrier']
    for i in range(4):
        s.append(f'ds_read2_b32 v[{36+2*i}:{37+2*i}], v32 offset0:{32*i} offset1:{32*i+16}')
    s.append(f's_lshl_b32 s3, s{sCB}, 5')
    s.append(f's_add_u32 s3, s3, {WS["modp"]}')
    s.append('s_waitcnt lgkmcnt(0)')
    for a, b in ((36, 37), (38, 39), (40, 41), (42, 43), (36, 38), (40, 42), (36, 40)):
        s.append(f'v_add_f32 v{a}, v{a}, v{b}')
    for w in ('16', '32'):
        s += ['v_mov_b32 v37, v36', f'v_permlane{w}_swap_b32 v36, v37', 'v_add_f32 v36, v36, v37']
    rnd1(s, 36)
    s.append(f'v_add_f32 v36, s{sADD}, v36')
    s.append('v_mov_b32_dpp v37, v36 quad_perm:[1,0,3,2] row_mask:0xf bank_mask:0xf')
    s.append('v_cvt_pk_bf16_f32 v34, v36, v37')
    s.append(lambda: tr.vm('ms', f'buffer_store_dword v34, v33, {srdr(SWS)}, s3 offen sc1'))
    X = 36
    A, B = 46, 1
    s.append(lambda: tr.wait(lambda t: t == 'xi'))
    for i in range(5):
        s += [f'v_lshlrev_b32 v{X+2*i}, 16, v{V_N+i}', f'v_and_b32 v{X+1+2*i}, 0xffff0000, v{V_N+i}']
    s += [f'v_add_f32 v{A}, v{X}, v{X+1}', f'v_add_f32 v{B}, v{X+2}, v{X+3}']
    for i in range(4, 10, 2):
        s += [f'v_add_f32 v{A}, v{A}, v{X+i}', f'v_add_f32 v{B}, v{B}, v{X+1+i}']
    s.append(f'v_add_f32 v{A}, v{A}, v{B}')
    wavesum(s, A, 2)
    s.append(f'v_mul_f32 v{A}, {f32hex(1.0/640)}, v{A}')
    for i in range(10):
        t = 2 + (i & 1)
        s.append(f'v_sub_f32 v{t}, v{X+i}, v{A}')
        s.append(f'v_mul_f32 v{B}, v{t}, v{t}' if i == 0 else f'v_fmac_f32 v{B}, v{t}, v{t}')
    wavesum(s, B, 2)
    s.append(f'v_mul_f32 v{B}, {f32hex(1.0/640)}, v{B}')
    rnd1(s, B)
    rnd1(s, A)
    s.append(f'v_add_f32 v{B}, {f32hex(1e-5)}, v{B}')
    rnd1(s, B)
    s.append(f'v_sqrt_f32 v{B}, v{B}')
    rnd1(s, B)
    s.append(f'v_rcp_f32 v{B}, v{B}')
    for i in range(5):
        a, b = X + 2 * i, X + 1 + 2 * i
        t = 2 + (i & 1)
        s += [f'v_sub_f32 v{a}, v{a}, v{A}', f'v_sub_f32 v{b}, v{b}, v{A}', f'v_cvt_pk_bf16_f32 v{t}, v{a}, v{b}',
              f'v_lshlrev_b32 v{a}, 16, v{t}', f'v_and_b32 v{b}, 0xffff0000, v{t}',
              f'v_mul_f32 v{a}, v{a}, v{B}', f'v_mul_f32 v{b}, v{b}, v{B}', f'v_cvt_pk_bf16_f32 v{V_N+i}, v{a}, v{b}']
    return s


def side_stream(k, tr, spins, isk, scr):
    s = []
    MODB = WS['modp']
    SCR = scr * 16384
    s.append(('mark', 'ms'))
    s += ['v_and_b32 v1, 7, v0', f'v_xor_b32 v1, s{sWAVE}, v1', 'v_lshlrev_b32 v1, 4, v1', 'v_lshl_add_u32 v1, v0, 7, v1',
          f'v_add_u32 v1, {SCR}, v1',
          'v_bfe_u32 v2, v0, 2, 3', f'v_xor_b32 v2, s{sWAVE}, v2', 'v_lshlrev_b32 v2, 4, v2', 'v_lshrrev_b32 v3, 2, v0',
          'v_lshl_add_u32 v2, v3, 7, v2', 'v_and_b32 v3, 3, v0', 'v_lshl_add_u32 v2, v3, 2, v2', f'v_add_u32 v2, {SCR + 8192}, v2']
    NPX = OPT.get('npx', 32)
    pfx = [('blk', ['s_lshr_b32 s3, s2, 3', 's_lshl_b32 s3, s3, 3', f's_add_u32 s3, s3, s{sWAVE}', f's_mul_i32 s3, s3, {NPX*128}',
                    f's_add_u32 s3, s3, {2048*1024 - NPX*128*256}']),
           lambda: tr.vm('pf', f'buffer_load_dword v{PK}, v{PK+2}, {srdr(SX)}, s3 offen')]
    pfq = [('blk', [f's_mul_i32 s3, s{sPAIR}, 80', f's_mul_i32 s61, s{sWAVE}, 10', 's_add_u32 s3, s3, s61', 's_lshl_b32 s3, s3, 13',
                    f's_lshl_b32 s61, s{sHEAD}, 8', 's_add_u32 s3, s3, s61']),
           lambda: tr.vm('pf', f'buffer_load_dword v{PK+1}, v{PK+3}, {srdr(SQ)}, s3 offen')]
    PFX, PFQ = OPT.get('pfx', 7), OPT.get('pfq', 8)
    if PFX < 7:
        s += [('at', PFX)] + pfx
    if PFQ < 7:
        s += [('at', PFQ)] + pfq
    s.append(('after', 'ms', OPT.get('msw', 1)))
    s.append(lambda: tr.wait(lambda t: t == 'ms'))
    s.append(('blk', [f's_cmp_lt_u32 s{sCB}, 80', f's_cselect_b32 s3, 0, 0x1000']))
    s.append(lambda: tr.vm('at', f'buffer_atomic_add v{V_ONE}, v{V_AT}, {srdr(SD)}, s3 offen sc1'))
    s.append(('mark', 'modflag'))
    P1 = OPT.get('p1', 6)
    B1 = OPT.get('b1', 11)
    assert B1 in bar_steps()
    if 7 <= PFX < P1:
        s += [('at', PFX)] + pfx
    if 7 <= PFQ < P1:
        s += [('at', PFQ)] + pfq
    s.append(('at', P1))
    s.append(lambda: tr.vm('pl', spins.load('cnt', None, V_AT)))
    if PFX >= P1:
        s += [('at', PFX)] + pfx
    if PFQ >= P1:
        s += [('at', PFQ)] + pfq
    s.append(('at', B1 - 1))
    s.append(('late',))
    s.append(lambda: tr.wait(lambda t: t == 'pl'))
    s.append(('blk', spins.check('cnt', None, 80, V_AT, sPASS0)))
    s.append(('dl', B1 - 1))
    s.append(('ab', B1))
    s.append(f's_mov_b32 s3, {MODB}')
    s.append(lambda: tr.vm('sa', f'buffer_load_dwordx4 {vr(32)}, v{V_L16}, {srdr(SWS)}, s3 offen sc1'))
    s.append(lambda: tr.vm('sa', f'buffer_load_dwordx4 {vr(40)}, v{V_L16}, {srdr(SWS)}, s3 offen offset:1280 sc1'))
    s.append(lambda: tr.vm('sa', f'buffer_load_dword v36, v{V_L4}, {srdr(SWS)}, s3 offen offset:1024 sc1'))
    s.append(lambda: tr.vm('sa', f'buffer_load_dword v37, v{V_L4}, {srdr(SWS)}, s3 offen offset:2304 sc1'))
    s.append(('at', B1 + 4))
    s.append(lambda: tr.wait(lambda t: t == 'sa'))
    for i in range(5):
        n = V_N + i
        sa = 32 + i if i < 4 else 36
        ca = 40 + i if i < 4 else 37
        s += [f'v_lshlrev_b32 v38, 16, v{n}', f'v_and_b32 v39, 0xffff0000, v{n}',
              f'v_lshlrev_b32 v44, 16, v{ca}', f'v_and_b32 v45, 0xffff0000, v{ca}',
              'v_mul_f32 v38, v38, v44', 'v_mul_f32 v39, v39, v45', 'v_cvt_pk_bf16_f32 v46, v38, v39',
              'v_lshlrev_b32 v38, 16, v46', 'v_and_b32 v39, 0xffff0000, v46',
              f'v_lshlrev_b32 v44, 16, v{sa}', f'v_and_b32 v45, 0xffff0000, v{sa}',
              'v_add_f32 v38, v38, v44', 'v_add_f32 v39, v39, v45', f'v_cvt_pk_bf16_f32 v{n}, v38, v39']
        if i == 3:
            s.append(f'ds_write_b128 v1, {vr(V_N)}')
    s.append(f'ds_write_b32 v2, v{V_N+4}')
    s.append(('mark', 'hw'))
    B2 = OPT.get('b2', 23)
    assert B2 in bar_steps() and B2 + 4 <= 31
    s.append(('dl', B2 - 1))
    s += [('blk', [f's_lshl_b32 s3, s{sWAVE}, 10', f's_add_u32 s3, s3, {SCR}', f'v_add_u32 v1, s3, v{V_L16}']),
          ('blk', [f's_lshl_b32 s3, s{sWAVE}, 8', f's_add_u32 s3, s3, {SCR + 8192}', f'v_add_u32 v2, s3, v{V_L16}']),
          'v_lshrrev_b32 v39, 3, v0', 'v_and_b32 v44, 7, v0', 'v_xor_b32 v3, v44, v39', 'v_lshlrev_b32 v3, 4, v3',
          'v_lshl_add_u32 v3, v39, 8, v3',
          ('blk', [f's_lshl_b32 s3, s{sWAVE}, 11', 'v_add_u32 v3, s3, v3']),
          ('blk', [f's_lshl_b32 s3, s{sWAVE}, 1', 'v_add_u32 v39, s3, v39']),
          'v_and_b32 v45, 7, v39', 'v_xor_b32 v38, v44, v45', 'v_lshlrev_b32 v38, 4, v38', 'v_lshl_add_u32 v38, v39, 8, v38',
          'v_add_u32 v38, 0x4000, v38', 'v_lshrrev_b32 v45, 4, v0', 'v_lshl_or_b32 v38, v45, 28, v38']
    s.append(('ab', B2))
    s += [f'ds_read_b128 {vr(32)}, v1', f'ds_read_b128 {vr(40)}, v2']
    s.append(('dl', B2))
    s.append(('at', B2 + 1))
    s.append(lambda: tr.vm('hs', f'buffer_store_dwordx4 {vr(32)}, v3, {srdr(SWS)}, s{sH1} offen sc1'))
    s.append(lambda: tr.vm('hs', f'buffer_store_dwordx4 {vr(40)}, v38, {srdr(SWS)}, s{sH1} offen sc1'))
    s.append(('mark', 'hs'))
    B3 = OPT.get('b3', 31)
    assert B3 in bar_steps()
    s.append(('at', B3 - 1))
    s.append(('late',))
    s.append(lambda: tr.wait(lambda t: t == 'hs'))
    s.append(('dl', B3 - 1))
    s.append(('ab', B3))
    s.append('s_lshr_b32 s3, s2, 4')
    s.append('s_lshl_b32 s3, s3, 8')
    s.append(f's_and_b32 s{sADD}, s2, 15')
    s.append(f's_lshl_b32 s{sADD}, s{sADD}, 2')
    s.append(f's_add_u32 s3, s3, s{sADD}')
    s.append(f's_add_u32 s3, s3, {FLG}')
    s.append(lambda: tr.vm('at', f'buffer_store_dword v{V_ONE}, v{V_AT}, {srdr(SWS)}, s3 offen sc1'))
    for db in range(8):
        s.append(f'v_xor_b32 v{V_QR+db}, {db*32}, v47')
    P2 = OPT.get('p2', 40)
    s.append(('at', P2))
    s.append(f's_lshl_b32 s{sADD}, s{sBLK}, 8')
    s.append(f's_add_u32 s{sADD}, s{sADD}, {FLG}')
    s.append(lambda: tr.vm('pl', spins.load(0xffff, f's{sADD}', V_PL)))
    s.append(('at', 46))
    s.append(('late',))
    s.append(lambda: tr.wait(lambda t: t == 'pl'))
    s.append(('blk', spins.check(0xffff, f's{sADD}', 1, V_PL, sPASS)))
    s.append(('dl', 46))
    s.append(('ab', 47))
    s.append(f's_lshl_b32 s{sADD}, s{sHEAD}, 8')
    s.append(f's_add_u32 s{sADD}, s{sADD}, {FLG + 4096}')
    s.append(f's_lshl_b32 s{sHROW}, s{sPAIR}, 2')
    s.append(f's_add_u32 s{sHROW}, s{sHROW}, s{sADD}')
    s.append(f'v_mov_b32 v{V_N}, 2')
    for q in range(8):
        s.append(('at', 49 + q))
        s += hload(k, tr, q)
        if q == 1:
            s.append(('late',))
            s.append(lambda: tr.wait(lambda t: t == ('st', 1)))
            s.append(('dl', 50))
            s.append(('ab', 51))
            s.append(lambda: tr.vm('at', f'buffer_store_dword v{V_ONE}, v{V_AT}, {srdr(SWS)}, s{sHROW} offen sc1'))
    s.append(('dl', 63))
    return s


def inv_blk(k, tr):
    sk, jn = k.newlabel('noinv'), k.newlabel('invj')
    return [('blk', [f's_cmp_lg_u32 s{sWAVE}, 0', f's_cbranch_scc1 {sk}', 'buffer_inv sc1', f's_branch {jn}', sk + ':',
                     f'buffer_load_dword v{V_POLL}, v{V_AT}, {srdr(SD)}, 0 offen', jn + ':']),
            lambda: tr.issued.append('inv')]


def hload(k, tr, q):
    out = []
    for qb in range(2):
        r = HR + (q % 8) * 8 + qb * 4

        def f(r=r, qb=qb):
            k(f's_add_u32 s61, s{sH0}, {OOB if OPT.get("noh") else qb*20480 + q*1024}')
            tr.vm(('h', q), f'buffer_load_dwordx4 {vr(r)}, v{V_L16}, {srdr(SWS)}, s61 offen sc1')
        out.append(f)
    return out


class Side:
    def __init__(self, k, lst):
        self.k = k
        self.l = lst
        self.step = -1
        self.bar = -1
        self.slot = 0
        self.marks = {}

    def pump(self, n):
        l = self.l
        while l and n > 0:
            x = l[0]
            if isinstance(x, tuple):
                if x[0] == 'at':
                    if self.step < x[1]:
                        return
                elif x[0] == 'ab':
                    if self.bar < x[1]:
                        return
                elif x[0] == 'late':
                    if self.slot < 5:
                        return
                elif x[0] == 'mark':
                    self.marks[x[1]] = self.step
                elif x[0] == 'after':
                    if self.step < self.marks[x[1]] + x[2]:
                        return
                elif x[0] == 'dl':
                    assert self.step <= x[1], ('deadline', x, self.step)
                elif x[0] == 'blk':
                    for t in x[1]:
                        self.k(t)
                    n -= 2
                l.pop(0)
                continue
            l.pop(0)
            if callable(x):
                x()
            else:
                self.k(x)
            n -= 1

    def check_deadline(self):
        for x in self.l:
            if isinstance(x, tuple) and x[0] == 'dl':
                assert self.step < x[1] + 1, ('deadline miss', x, self.step)
                return


def kv_pack(isk, f):
    if isk:
        a0, a1 = ACC + f * 8, ACC + f * 8 + 4
    else:
        u, nb = f >> 1, f & 1
        a0, a1 = ACC + (4 * u + nb) * 4, ACC + (4 * u + 2 + nb) * 4
    t = PK + 4 * f
    return [f'v_cvt_pk_bf16_f32 v{t}, v{a0}, v{a0+1}', f'v_cvt_pk_bf16_f32 v{t+1}, v{a0+2}, v{a0+3}',
            f'v_cvt_pk_bf16_f32 v{t+2}, v{a1}, v{a1+1}', f'v_cvt_pk_bf16_f32 v{t+3}, v{a1+2}, v{a1+3}']


def kv_store(k, tr, isk, st, f):
    off = st * 4 * 65536 + (f * 4096 if isk else (f >> 1) * 8192 + (f & 1) * 1024)
    if OPT.get('nost'):
        off = OOB
    k(f's_add_u32 s{sT2}, s{sKVS}, {off}')
    tr.vm(('st', st), f'buffer_store_dwordx4 {vr(PK+4*f)}, v{V_L16}, {srdr(SWS)}, s{sT2} offen {OPT.get("stm", "sc1").replace("+", " ")}')


def qreads(q):
    S = q // 2
    out = []
    for db in range(8):
        for t in range(2):
            r = WQ[q & 1] + 4 * db + 2 * t
            out.append(f'ds_read_b64_tr_b16 v[{r}:{r+1}], v{V_QR+db} offset:{(S % 4)*16384 + t*2048 + (q & 1)*1024}')
    return out


def kv_main(k, tr, spins, it, slot, avail, isk, scr):
    side = Side(k, side_stream(k, tr, spins, isk, scr))

    def reads(s):
        S = s // 2
        sl = slot[it.index(('x', S))]
        out = []
        if s < 16:
            sw = slot[it.index(('w', S))]
            for nb in range(2):
                for t in range(2):
                    r = wreg(s, nb) + 2 * t
                    out.append(f'ds_read_b64_tr_b16 v[{r}:{r+1}], v{V_WR+2*(sw//4)+nb} offset:{(sw % 4)*16384 + t*2048 + (s & 1)*1024}')
        xo = [f'ds_read_b128 {vr(XF[s & 1]+4*rb)}, v{V_XR+2*(sl//4)+(s & 1)} offset:{(sl % 4)*16384 + rb*2048}' for rb in range(4)]
        return xo[:1] + out + xo[1:]

    bars = bar_steps()

    def stage_items(S):
        if S < 32:
            return [it.index(('x', S))] + ([it.index(('w', S))] if S < 8 else [])
        return [40 + q for q in range(5)]

    def wait_stage(Ss):
        idx = sum((stage_items(S) for S in Ss), [])
        if OPT.get('skipdma'):
            idx = [i for i in idx if ('it', i) in tr.issued]
            if not idx:
                return
        for i in idx:
            assert tr.issued.count(('it', i)) == 2, ('item not issued', i, Ss)
        tr.wait(lambda t: t[0] == 'it' and t[1] in idx)

    pend = []
    for i in range(NPRE, len(it)):
        pend += [(avail[i], p) for p in dma_item(k, tr, it, slot, i)]
    wait_stage([0])
    k('s_barrier')
    tstamp(k, 1)
    for r in reads(0):
        k(r)
    side.step = 0
    for s in range(64):
        st, ks, S = s // 16, s % 16, s // 2
        side.step = s
        side.check_deadline()
        if 'ts' in OPT:
            tl = [int(x) for x in OPT['ts'].split(',')]
            if s in tl:
                tstamp(k, 2 + tl.index(s))
        elif s in (16, 32, 48):
            tstamp(k, 1 + s // 16)
        ms = []
        for rb in range(4):
            for nb in range(2):
                acc = ACC + (rb * 2 + nb) * 4
                x, w = vr(XF[s & 1] + 4 * rb), vr(wreg(ks, nb))
                a, b = (w, x) if isk else (x, w)
                ms.append(f'v_mfma_f32_16x16x32_bf16 {vr(acc)}, {a}, {b}, {"0" if ks == 0 else vr(acc)}')
        rs = reads(s + 1) if s + 1 < 64 else qreads(0)
        k('s_waitcnt lgkmcnt(0)')
        if s in bars:
            nb_ = min([x for x in bars if x > s] + [65])
            wait_stage(range(S + 1, (nb_ - 1) // 2 + 1))
            k('s_barrier')
            side.bar = s
        nd = 0
        cap = 4 if s < 16 else (4 if s == 63 else 2)
        for i in range(8):
            side.slot = i
            if ks == 0 and st > 0:
                fl = ([i // 2] if i % 2 == 0 else []) if isk else ([i // 2, i // 2 + 1] if i % 4 == 0 else [])
                for f in fl:
                    for x in kv_pack(isk, f):
                        k(x)
            for _ in range(2 if len(rs) <= 2 * (8 - i) else 3):
                if rs:
                    k(rs.pop(0))
            k(ms[i])
            if pend and pend[0][0] <= side.bar and nd < cap and i % 2 == 1:
                pend.pop(0)[1]()
                nd += 1
            elif st > 0 and ks % 4 == 1 and i == 6:
                kv_store(k, tr, isk, st - 1, ks // 4)
            elif not (ks == 0 and st > 0):
                side.pump(OPT['rate'])
        assert not rs, (s, rs)
    assert not pend
    side.step = 64
    side.pump(1000)
    assert not side.l, side.l
    print('marks', side.marks)


O0, S0, Q0, P0, R0, NM, T0, ONES, LA = 192, 160, 128, 112, 80, 72, 56, 40, 44
V_KADDR, V_VADDR, V_MDB, V_MD, V_NEG, V_TS, V_L, V_ST = 15, 16, 17, 18, 19, 24, 25, 27
STASH = 131072
sBIAS, sCLAMP, sJ, sFIRST, sGB, sLB = 48, 49, 50, 51, 52, 53
sTN = 59
sJJ, sGJ, sMLO, sFIN, sSWI = 7, 8, 10, 13, 14
sCTX = 17


def Or(db, qb): return O0 + (db * 2 + qb) * 4
def Sr(kvb, qb): return S0 + (kvb * 2 + qb) * 4
def Qr(ks, qb): return Q0 + (ks * 2 + qb) * 4
def Pr(u, qb): return P0 + (u * 2 + qb) * 4


def kv_pieces(k, tr, tile, isv, par):
    out = []
    for i in range(4):
        def p(i=i):
            if i == 0:
                k(f's_add_u32 m0, s{sLB}, {par*65536 + isv*16384}')
                k(f's_add_u32 s{sT}, s{sGB}, {tile*32768 + isv*16384}')
            tr.vm('kv', f'buffer_load_dwordx4 v{V_L16}, {srdr(SWS)}, s{sT} offen offset:{i*1024} sc1 lds')
        out.append(p)
    return out


def qproj(k, tr, spins, isk):
    side = []
    side += [f's_lshl_b32 s{sGB}, s{sHEAD}, 20', f's_lshl_b32 s3, s{sRQ}, 12', f's_add_u32 s{sGB}, s{sGB}, s3',
             f's_lshl_b32 s{sLB}, s{sG}, 15', f's_add_u32 s{sLB}, s{sLB}, s3',
             f's_lshl_b32 s{sJJ}, s{sPAIR}, 1', f's_add_u32 s{sJJ}, s{sJJ}, 2', f's_sub_u32 s{sGJ}, s{sG}, s{sJJ}',
             ('blk', [f's_cmp_eq_u32 s{sG}, 1', f's_cselect_b32 s{sFIN}, s{sJJ}, 99']),
             f's_sub_u32 s{sSWI}, s{sFIN}, 1', f's_sub_u32 s{sMLO}, s{sFIN}, 2',
             f's_mov_b32 s{sBIAS}, {f32hex(BIAS)}', f's_mov_b32 s{sCLAMP}, {f32hex(-1e20)}',
             f's_mov_b32 s{sJ}, 0', f's_mov_b32 s{sFIRST}, 1', f's_mov_b32 s{sTN}, 1']
    side += [f's_lshl_b32 s3, s{sG}, 15', f'v_add_u32 v{V_KADDR}, s3, v{V_L16}', f'v_mov_b32 v{V_VADDR}, v{V_KADDR}',
             'v_and_b32 v1, 15, v0', 'v_lshrrev_b32 v2, 4, v0', 'v_lshlrev_b32 v2, 2, v2', 'v_sub_u32 v1, v1, v2',
             ('blk', [f's_lshl_b32 s3, s{sRQ}, 5', f'v_add_u32 v{V_MDB}, s3, v1']), f'v_mov_b32 v{V_NEG}, {f32hex(-1e30)}',
             ('blk', [f's_lshl_b32 s3, s{sRQ}, 13', f's_add_u32 s3, s3, {STASH}', f'v_add_u32 v{V_ST}, s3, v{V_L16}'])]
    side += [f'v_mov_b32 v{ONES+r}, 0x3f803f80' for r in range(4)]
    side.append(('at', 1))
    side += [f'v_mov_b32 v{LA+r}, 0' for r in range(8)]
    side.append(('at', 4))
    side.append(lambda: tr.vm('pl', spins.load(0xff, f's{sADD}', V_PK)))
    side.append(('at', 8))
    side.append(('late',))
    side.append(lambda: tr.wait(lambda t: t == 'pl'))
    side.append(('blk', spins.check(0xff, f's{sADD}', 1, V_PK, sPASS0)))
    side.append(('dl', 8))
    side.append(('ab', 9))
    side.append(lambda: tr.vm('at', f'buffer_store_dword v{V_N}, v{V_AT}, {srdr(SWS)}, s{sHROW} offen sc1'))
    side += kv_pieces(k, tr, 0, 0, 0) + kv_pieces(k, tr, 0, 1, 0)
    side.append(('ab', 13))
    side += kv_pieces(k, tr, 1, 0, 1)
    side.append(('dl', 16))
    side.append(('at', 17))
    side.append(lambda: tr.vm('pl', spins.load(0xff, f's{sADD}', V_PK)))
    side.append(f's_mov_b32 s{sT2}, {f32hex(QSCALE)}')
    side = Side(k, side)
    for q in range(20):
        side.step = q
        side.check_deadline()
        if 'ts' in OPT:
            tl = [int(x) for x in OPT['ts'].split(',')]
            if q + 100 in tl:
                tstamp(k, 2 + tl.index(q + 100))
        ms = []
        for db in range(8):
            for qb in range(2):
                acc = QA + (db * 2 + qb) * 4
                ms.append(f'v_mfma_f32_16x16x32_bf16 {vr(acc)}, {vr(WQ[q & 1]+4*db)}, {vr(HR+(q % 8)*8+qb*4)}, {"0" if q == 0 else vr(acc)}')
        rs = qreads(q + 1) if q + 1 < 20 else []
        tr.wait(lambda t: t == ('h', q))
        k('s_waitcnt lgkmcnt(0)')
        if q in (7, 15):
            for db in range(8):
                k(f'v_add_u32 v{V_QR+db}, 0x10000, v{V_QR+db}')
        if q in (9, 13):
            if q == 9:
                tr.wait(lambda t: t[0] == 'it' or t == ('st', 3))
            k('s_barrier')
            side.bar = q
        extra = []
        if q >= 1 and q + 7 < 20:
            extra += hload(k, tr, q + 7)
        if q >= 13:
            extra += [f'v_mov_b32 v{HR+((q-1) % 8)*8+r}, 0' for r in range(8)]
        for i in range(16):
            side.slot = i // 2
            if q == 0 and i < 8 and i % 2 == 0:
                for x in kv_pack(isk, i // 2):
                    k(x)
            for _ in range(2 if i < 4 else 1):
                if rs:
                    k(rs.pop(0))
            k(ms[i])
            if q < 4 and i == 10:
                kv_store(k, tr, isk, 3, q)
            elif extra:
                x = extra.pop(0)
                x() if callable(x) else k(x)
            else:
                side.pump(1)
            if q == 19 and i >= 6 and i % 4 == 2:
                qpack(k, (i - 6) // 4)
        assert not rs and not extra
    side.step = 20
    side.pump(1000)
    assert not side.l
    qpack(k, 3)
    for r in range(8):
        k(f'v_mov_b32 v{HR+3*8+r}, 0')
    for r in range(8):
        k(f'v_mov_b32 v{NM+r}, 0')


def qpack(k, ks):
    for qb in range(2):
        a0, a1 = QA + (4 * ks + qb) * 4, QA + (4 * ks + 2 + qb) * 4
        for a in (a0, a1):
            for r in range(4):
                k(f'v_mul_f32 v{a+r}, s{sT2}, v{a+r}')
        q = Qr(ks, qb)
        k(f'v_cvt_pk_bf16_f32 v{q}, v{a0}, v{a0+1}')
        k(f'v_cvt_pk_bf16_f32 v{q+1}, v{a0+2}, v{a0+3}')
        k(f'v_cvt_pk_bf16_f32 v{q+2}, v{a1}, v{a1+1}')
        k(f'v_cvt_pk_bf16_f32 v{q+3}, v{a1+2}, v{a1+3}')


def loop_dma_pieces():
    pre = [f's_lshl_b32 s56, s{sTN}, 15',
           f's_add_u32 s56, s56, s{sGB}',
           's_add_u32 s56, s56, 16384',
           f's_and_b32 s55, s{sJ}, 1',
           's_lshl_b32 s55, s55, 16',
           f's_add_u32 s55, s55, s{sLB}',
           's_xor_b32 s57, s55, 0x14000',
           f's_add_u32 s58, s{sJ}, 2',
           's_lshl_b32 s54, s58, 1',
           f's_add_u32 s54, s54, s{sGJ}',
           f's_cmp_lt_u32 s58, s{sJJ}',
           f's_cselect_b32 s{sTN}, s58, s54',
           f's_lshl_b32 s54, s{sTN}, 15',
           f's_add_u32 s54, s54, s{sGB}',
           's_cmp_gt_u32 s58, 16',
           f's_cselect_b32 s{SK2+2}, 0, s{SWS+2}']
    if OPT.get('nodma'):
        pre.append(f's_mov_b32 s{SK2+2}, 0')
    if OPT.get('hotdma'):
        pre += [f's_mov_b32 s54, s{sGB}', f's_mov_b32 s56, s{sGB}']
    ps = []
    for i in range(4):
        ps.append((['s_mov_b32 m0, s57'] if i == 0 else []) +
                  [f'buffer_load_dwordx4 v{V_L16}, {srdr(SK2 if OPT.get("nodma") else SWS)}, s56 offen offset:{i*1024} sc1 lds'])
    for i in range(4):
        ps.append((['s_mov_b32 m0, s55'] if i == 0 else []) +
                  [f'buffer_load_dwordx4 v{V_L16}, {srdr(SK2)}, s54 offen offset:{i*1024} sc1 lds'])
    return pre, ps


def frag_list(pv, qk):
    L = []
    if pv:
        for u in range(2):
            for db in range(8):
                ms = [(Or(db, qb), Pr(u, qb), Or(db, qb)) for qb in range(2)]
                if db in (2, 5):
                    qb = 0 if db == 2 else 1
                    ms.append((LA + 4 * qb, Pr(u, qb), LA + 4 * qb))
                L.append((V_VADDR, 16384 + (u * 8 + db) * 1024, ms))
    if qk:
        for ks in range(4):
            for kvb in range(4):
                ms = [(Sr(kvb, qb), Qr(ks, qb), (NM + 4 * qb) if ks == 0 else Sr(kvb, qb)) for qb in range(2)]
                L.append((V_KADDR, (kvb * 4 + ks) * 1024, ms))
    return L


PF = 7


def rd(L, i):
    a, off, _ = L[i]
    return f'ds_read_b128 {vr(R0 + (i % 8) * 4)}, v{a} offset:{off}'


def prefetch(k, L):
    for i in range(min(PF, len(L))):
        k(rd(L, i))


def mfma_phase(k, L):
    n = len(L)
    for i in range(n):
        k(f's_waitcnt lgkmcnt({min(n, i + PF) - (i + 1)})')
        r = R0 + (i % 8) * 4
        ms = L[i][2]
        d, b, c = ms[0]
        k(f'v_mfma_f32_16x16x32_bf16 {vr(d)}, {vr(r)}, {vr(b)}, {vr(c)}')
        if i + PF < n:
            k(rd(L, i + PF))
        d, b, c = ms[1]
        k(f'v_mfma_f32_16x16x32_bf16 {vr(d)}, {vr(r)}, {vr(b)}, {vr(c)}')
        if len(ms) > 2:
            d, b, c = ms[2]
            k(f'v_mfma_f32_16x16x32_bf16 {vr(d)}, {vr(ONES)}, {vr(b)}, {vr(c)}')


def ctx_base(k, blk_expr):
    k(f's_lshl_b32 s54, {blk_expr}, 2')
    k(f's_add_u32 s54, s54, s{sRQ}')
    k('s_lshl_b32 s54, s54, 18')
    k(f's_lshl_b32 s55, s{sHEAD}, 12')
    k('s_add_u32 s54, s54, s55')
    k(f's_add_u32 s54, s54, {WS["ctx"]}')
    k('s_add_u32 s55, s54, 0x20000')


def finalize_b(k):
    sk = k.newlabel('nofin')
    k(f's_cmp_lg_u32 s{sJ}, s{sFIN}')
    k(f's_cbranch_scc1 {sk}')
    ctx_base(k, f's{sPAIR}')
    for qb in range(2):
        k(f'v_rcp_f32 v{T0+qb}, v{LA+4*qb}')
    for r in range(8):
        k(f'v_mov_b32 v{LA+r}, 0')
    n = 0
    for ks in range(4):
        for qb in range(2):
            a0, a1 = Or(2 * ks, qb), Or(2 * ks + 1, qb)
            t = R0 + n * 4
            n += 1
            for a in (a0, a1):
                for r in range(4):
                    k(f'v_mul_f32 v{a+r}, v{a+r}, v{T0+qb}')
            k(f'v_cvt_pk_bf16_f32 v{t}, v{a0}, v{a0+1}')
            k(f'v_cvt_pk_bf16_f32 v{t+1}, v{a0+2}, v{a0+3}')
            k(f'v_cvt_pk_bf16_f32 v{t+2}, v{a1}, v{a1+1}')
            k(f'v_cvt_pk_bf16_f32 v{t+3}, v{a1+2}, v{a1+3}')
            k(f'buffer_store_dwordx4 {vr(t)}, v{V_L16}, {srdr(SWS)}, s{54+qb} offen offset:{ks*1024}')
            for a in (a0, a1):
                for r in range(4):
                    k(f'v_mov_b32 v{a+r}, 0')
    k.label(sk)


def softmax(k, last):
    lab, rare, done = k.newlabel('sm'), k.newlabel('rare'), k.newlabel('smd')
    finalize_b(k)
    pieces = []
    if not last:
        pre, pieces = loop_dma_pieces()
        for x in pre:
            k(x)

    def piece():
        if pieces:
            for x in pieces.pop(0):
                k(x)
    nm = k.newlabel('nomask')
    if last:
        k(f's_lshl_b32 s3, s{sG}, 6')
    else:
        k(f's_sub_u32 s3, s{sJ}, s{sMLO}')
        k('s_cmp_ge_u32 s3, 2')
        k(f's_cbranch_scc1 {nm}')
        k('s_lshl_b32 s3, s3, 6')
    k(f'v_subrev_u32 v{V_MD}, s3, v{V_MDB}')
    for kvb in range(4):
        for qb in range(2):
            for r in range(4):
                k(f'v_cmp_le_i32 s[{94+2*r}:{95+2*r}], {16*kvb + r - 16*qb}, v{V_MD}')
            for r in range(4):
                s = Sr(kvb, qb) + r
                k(f'v_cndmask_b32 v{s}, v{V_NEG}, v{s}, s[{94+2*r}:{95+2*r}]')
    if not last:
        k.label(nm)
    k(f's_cmp_lg_u32 s{sFIRST}, 0')
    k(f's_cbranch_scc1 {rare}')
    k.label(lab)
    n = 0
    for u in range(2):
        for qb in range(2):
            t = T0 + (n & 1) * 8
            s0, s1 = Sr(2 * u, qb), Sr(2 * u + 1, qb)
            for e in range(8):
                s = (s0 + e) if e < 4 else (s1 + e - 4)
                if e in (0, 5):
                    piece()
                k(f'v_exp_f32 v{t+e}, v{s}')
            p = Pr(u, qb)
            for e in range(0, 8, 2):
                k(f'v_cvt_pk_bf16_f32 v{p+e//2}, v{t+e}, v{t+e+1}')
            if n == 0:
                k(f'v_or3_b32 v{V_TS}, v{p}, v{p+1}, v{p+2}')
                k(f'v_or_b32 v{V_TS}, v{V_TS}, v{p+3}')
            else:
                k(f'v_or3_b32 v{V_TS}, v{V_TS}, v{p}, v{p+1}')
                k(f'v_or3_b32 v{V_TS}, v{V_TS}, v{p+2}, v{p+3}')
            n += 1
    k(f'v_and_b32 v{V_TS}, 0x40004000, v{V_TS}')
    k(f'v_cmp_ne_u32 vcc, 0, v{V_TS}')
    k(f's_cbranch_vccz {done}')
    k(f's_cmp_eq_u32 s{sFIRST}, 2')
    k(f's_cbranch_scc1 {done}')
    k.label(rare)
    for qb in range(2):
        m = T0 + qb
        vals = [Sr(kvb, qb) + r for kvb in range(4) for r in range(4)]
        k(f'v_max3_f32 v{m}, v{vals[0]}, v{vals[1]}, v{vals[2]}')
        for i in range(3, 15, 2):
            k(f'v_max3_f32 v{m}, v{m}, v{vals[i]}, v{vals[i+1]}')
        k(f'v_max_f32 v{m}, v{m}, v{vals[15]}')
    for sw in ('v_permlane32_swap_b32', 'v_permlane16_swap_b32'):
        for qb in range(2):
            k(f'v_mov_b32 v{T0+2+qb}, v{T0+qb}')
        for qb in range(2):
            k(f'{sw} v{T0+qb}, v{T0+2+qb}')
        for qb in range(2):
            k(f'v_max_f32 v{T0+qb}, v{T0+qb}, v{T0+2+qb}')
    for qb in range(2):
        k(f'v_add_f32 v{T0+qb}, s{sBIAS}, v{T0+qb}')
    nf, jn = k.newlabel('nf'), k.newlabel('jn')
    k(f's_cmp_lg_u32 s{sFIRST}, 0')
    k(f's_cbranch_scc0 {nf}')
    for qb in range(2):
        k(f'v_max_f32 v{T0+qb}, s{sCLAMP}, v{T0+qb}')
    k(f's_branch {jn}')
    k.label(nf)
    for qb in range(2):
        k(f'v_max_f32 v{T0+qb}, 0, v{T0+qb}')
        k(f'v_exp_f32 v{T0+2+qb}, -v{T0+qb}')
    for qb in range(2):
        for r in range(4):
            k(f'v_mul_f32 v{LA+4*qb+r}, v{LA+4*qb+r}, v{T0+2+qb}')
        for db in range(8):
            for r in range(4):
                o = Or(db, qb) + r
                k(f'v_mul_f32 v{o}, v{o}, v{T0+2+qb}')
    k.label(jn)
    for qb in range(2):
        for r in range(4):
            k(f'v_sub_f32 v{NM+4*qb+r}, v{NM+4*qb+r}, v{T0+qb}')
        for kvb in range(4):
            for r in range(4):
                s = Sr(kvb, qb) + r
                k(f'v_sub_f32 v{s}, v{s}, v{T0+qb}')
    k(f's_mov_b32 s{sFIRST}, 2')
    k(f's_branch {lab}')
    k.label(done)
    k(f's_mov_b32 s{sFIRST}, 0')
    if not last:
        sk = k.newlabel('nosw')
        k(f's_cmp_lg_u32 s{sJ}, s{sSWI}')
        k(f's_cbranch_scc1 {sk}')
        for i in range(8):
            k(f'ds_read_b128 {vr(Q0+4*i)}, v{V_ST} offset:{i*1024}')
        for r in range(8):
            k(f'v_mov_b32 v{NM+r}, 0')
        k(f's_mov_b32 s{sFIRST}, 1')
        k.label(sk)


def attention(k, spins):
    k('s_waitcnt vmcnt(0)')
    for x in spins.check(0xff, f's{sADD}', 2, V_PK, sPASS0):
        k(x)
    k('s_barrier')
    if 'ts' not in OPT:
        tstamp(k, 6)
    l1 = k.newlabel('a')
    k(f's_cmp_lg_u32 s{sG}, 0')
    k(f's_cbranch_scc1 {l1}')
    for i in range(8):
        k(f'ds_write_b128 v{V_ST}, {vr(Q0+4*i)} offset:{i*1024}')
    if OPT.get('inv'):
        l0 = k.newlabel('ninv')
        k(f's_cmp_lg_u32 s{sWAVE}, 0')
        k(f's_cbranch_scc1 {l0}')
        k('buffer_inv sc1')
        k.label(l0)
    k('s_waitcnt lgkmcnt(0)')
    k('s_barrier')
    k.label(l1)
    L = frag_list(False, True)
    k('s_setprio 1')
    prefetch(k, L)
    mfma_phase(k, L)
    k('s_setprio 0')
    k(f'v_xor_b32 v{V_KADDR}, 0x10000, v{V_KADDR}')
    k('s_barrier')
    loop = k.newlabel('loop')
    k.label(loop)
    softmax(k, False)
    L = frag_list(True, True)
    prefetch(k, L)
    k('s_barrier')
    k('s_setprio 1')
    mfma_phase(k, L)
    k('s_setprio 0')
    k(f'v_xor_b32 v{V_KADDR}, 0x10000, v{V_KADDR}')
    k(f'v_xor_b32 v{V_VADDR}, 0x10000, v{V_VADDR}')
    k(f's_add_u32 s{sJ}, s{sJ}, 1')
    k('s_waitcnt vmcnt(0)')
    k('s_barrier')
    k(f's_cmp_lt_u32 s{sJ}, 16')
    k(f's_cbranch_scc1 {loop}')
    softmax(k, True)
    L = frag_list(True, False)
    prefetch(k, L)
    k('s_barrier')
    k('s_setprio 1')
    mfma_phase(k, L)
    k('s_setprio 0')
    k('s_barrier')
    l2 = k.newlabel('b')
    k(f's_cmp_eq_u32 s{sG}, 0')
    k(f's_cbranch_scc1 {l2}')
    k('s_barrier')
    k.label(l2)
    if 'ts' not in OPT:
        tstamp(k, 7)
    k(f's_lshl_b32 s3, s{sWAVE}, 13')
    k(f'v_add_u32 v{T0+4}, s3, v{V_L16}')
    k(f'v_xor_b32 v{T0+5}, 0x8000, v{T0+4}')
    k(f's_lshl_b32 s3, s{sWAVE}, 10')
    k('s_add_u32 s3, s3, 0x10000')
    k(f'v_add_u32 v{T0+6}, s3, v{V_L16}')
    k(f'v_xor_b32 v{T0+7}, 0x1000, v{T0+6}')
    k(f'v_mov_b32 v{T0}, v{NM}')
    k(f'v_mov_b32 v{T0+1}, v{NM+4}')
    k(f'v_mov_b32 v{T0+2}, v{LA}')
    k(f'v_mov_b32 v{T0+3}, v{LA+4}')
    k(f'ds_write_b128 v{T0+6}, {vr(T0)}')
    k(f's_sub_u32 s3, 15, s{sPAIR}')
    ctx_base(k, 's3')
    gb, ge = k.newlabel('gb'), k.newlabel('ge')
    k(f's_cmp_lg_u32 s{sG}, 0')
    k(f's_cbranch_scc1 {gb}')
    for grp in range(2):
        if grp == 1:
            k.label(gb)
        keep = range(0, 4) if grp == 0 else range(4, 8)
        send = range(4, 8) if grp == 0 else range(0, 4)
        for i, db in enumerate(send):
            for qb in range(2):
                k(f'ds_write_b128 v{T0+4}, {vr(Or(db, qb))} offset:{(i*2+qb)*1024}')
        k('s_waitcnt lgkmcnt(0)')
        k('s_barrier')
        k(f'ds_read_b128 {vr(T0+8)}, v{T0+7}')
        for i, db in enumerate(keep):
            for qb in range(2):
                k(f'ds_read_b128 {vr(S0 + (i*2+qb)*4)}, v{T0+5} offset:{(i*2+qb)*1024}')
        k('s_waitcnt lgkmcnt(8)')
        for qb in range(2):
            k(f'v_min_f32 v{T0+12+qb}, v{T0+qb}, v{T0+8+qb}')
        for qb in range(2):
            k(f'v_sub_f32 v{T0+qb}, v{T0+12+qb}, v{T0+qb}')
            k(f'v_sub_f32 v{T0+8+qb}, v{T0+12+qb}, v{T0+8+qb}')
        for qb in range(2):
            k(f'v_exp_f32 v{T0+qb}, v{T0+qb}')
            k(f'v_exp_f32 v{T0+8+qb}, v{T0+8+qb}')
        for qb in range(2):
            k(f'v_mul_f32 v{T0+2+qb}, v{T0+2+qb}, v{T0+qb}')
            k(f'v_fma_f32 v{T0+2+qb}, v{T0+10+qb}, v{T0+8+qb}, v{T0+2+qb}')
        for qb in range(2):
            k(f'v_rcp_f32 v{T0+2+qb}, v{T0+2+qb}')
        for qb in range(2):
            k(f'v_mul_f32 v{T0+qb}, v{T0+qb}, v{T0+2+qb}')
            k(f'v_mul_f32 v{T0+8+qb}, v{T0+8+qb}, v{T0+2+qb}')
        k('s_waitcnt lgkmcnt(0)')
        for i2 in range(2):
            ks = keep[0] // 2 + i2
            for qb in range(2):
                for dd in range(2):
                    o = Or(2 * ks + dd, qb)
                    p = S0 + ((2 * i2 + dd) * 2 + qb) * 4
                    for r in range(4):
                        k(f'v_mul_f32 v{o+r}, v{o+r}, v{T0+qb}')
                        k(f'v_fma_f32 v{o+r}, v{p+r}, v{T0+8+qb}, v{o+r}')
                a0, a1 = Or(2 * ks, qb), Or(2 * ks + 1, qb)
                t = R0 + (i2 * 2 + qb) * 4
                k(f'v_cvt_pk_bf16_f32 v{t}, v{a0}, v{a0+1}')
                k(f'v_cvt_pk_bf16_f32 v{t+1}, v{a0+2}, v{a0+3}')
                k(f'v_cvt_pk_bf16_f32 v{t+2}, v{a1}, v{a1+1}')
                k(f'v_cvt_pk_bf16_f32 v{t+3}, v{a1+2}, v{a1+3}')
                k(f'buffer_store_dwordx4 {vr(t)}, v{V_L16}, {srdr(SWS)}, s{54+qb} offen offset:{ks*1024}')
        if grp == 0:
            k(f's_branch {ge}')
    k.label(ge)


def build_k1():
    k = Kern('k1')
    k('s_cmp_ge_u32 s2, 256')
    k('s_cbranch_scc1 k1_end')
    tstart(k)
    it, slot, issue, scr = ring_plan()
    tr = Tracker(k)
    spins = Spins(k)
    prologue(k, tr, it, slot, scr)
    issued0 = list(tr.issued)
    k(f's_cmp_lg_u32 s{sISV}, 0')
    k('s_cbranch_scc1 k1_vpath')
    for isk in (True, False):
        tr.issued[:] = issued0
        if not isk:
            k.label('k1_vpath')
        kv_main(k, tr, spins, it, slot, issue, isk, scr)
        if 'ts' not in OPT:
            tstamp(k, 5)
        qproj(k, tr, spins, isk)
        if isk:
            k('s_branch k1_att')
    k.label('k1_att')
    attention(k, spins)
    tdump(k, 8, SWS, 0)
    k('s_endpgm')
    spins.emit()
    k.label('k1_end')
    return k, 256, 512, 163840, 256
```

```python
from asmgen import *
import asmgen
from k_small import f32hex, vr, unpack, rnd, rnd1, swapsum

GU = WS['moe']
SEL = WS['moe'] + 65536

SORT8 = [(0, 1), (2, 3), (4, 5), (6, 7), (0, 2), (1, 3), (4, 6), (5, 7), (1, 2), (5, 6), (0, 4), (3, 7), (1, 5), (2, 6),
         (1, 4), (3, 6), (2, 4), (3, 5), (3, 4)]


def topk(k, K, T, lds):
    k(f'v_lshlrev_b32 v{T}, 3, v1')
    k(f'v_sub_u32 v{T}, 2047, v{T}')
    for e in range(8):
        k(f'v_ashrrev_i32 v{T+1}, 31, v{K+e}')
        k(f'v_or_b32 v{T+1}, 0x80000000, v{T+1}')
        k(f'v_xor_b32 v{K+e}, v{K+e}, v{T+1}')
        k(f'v_and_b32 v{K+e}, 0xffff0000, v{K+e}')
        k(f'v_sub_u32 v{T+1}, v{T}, {e}' if False else f'v_subrev_u32 v{T+1}, {e}, v{T}')
        k(f'v_or_b32 v{K+e}, v{K+e}, v{T+1}')
    for (a, b) in SORT8:
        k(f'v_max_u32 v{T}, v{K+a}, v{K+b}')
        k(f'v_min_u32 v{K+b}, v{K+a}, v{K+b}')
        k(f'v_mov_b32 v{K+a}, v{T}')
    k(f'v_mov_b32 v{T+3}, 0')
    for t in range(8):
        k(f'v_max_u32_dpp v{T}, v{K}, v{K} row_ror:1 row_mask:0xf bank_mask:0xf')
        for sh in (2, 4, 8):
            k(f'v_max_u32_dpp v{T}, v{T}, v{T} row_ror:{sh} row_mask:0xf bank_mask:0xf')
        swapsum(k, [T], [T + 1], op='v_max_u32')
        k(f'v_cmp_eq_u32 vcc, v{T}, v{K}')
        for e in range(7 - t):
            k(f'v_cndmask_b32 v{K+e}, v{K+e}, v{K+e+1}, vcc')
        k(f'v_cmp_eq_u32 vcc, {t}, v0')
        k(f'v_cndmask_b32 v{T+3}, v{T+3}, v{T}, vcc')
    k('s_lshl_b32 s25, s22, 5')
    k(f'v_lshlrev_b32 v{T}, 2, v0')
    k(f'v_add_u32 v{T+1}, s25, v{T}')
    k('v_cmp_gt_u32 vcc, 8, v0')
    k('s_and_saveexec_b64 s[26:27], vcc')
    k(f'ds_write_b32 v{T+1}, v{T+3} offset:{lds}')
    k('s_mov_b64 exec, s[26:27]')
    k('s_waitcnt lgkmcnt(0)')
    k('s_barrier')
    k(f'v_and_b32 v{T}, 124, v{T}')
    k(f'ds_read_b32 v{T+2}, v{T} offset:{lds}')
    k(f'v_mov_b32 v{T+1}, 0')
    k(f'v_mov_b32 v{T+3}, 0')
    for i in range(8):
        tt = T + 4 + (i & 1) * 4
        k(f'ds_read_b128 {vr(tt)}, v{T+1} offset:{lds + i*16}')
        k('s_waitcnt lgkmcnt(0)')
        for e in range(4):
            k(f'v_cmp_gt_u32 vcc, v{tt+e}, v{T+2}')
            k(f'v_addc_co_u32 v{T+3}, vcc, 0, v{T+3}, vcc')
    k(f'v_lshlrev_b32 v{T+1}, 2, v{T+3}')
    k(f'v_cmp_gt_u32 vcc, 8, v{T+3}')
    k('s_and_saveexec_b64 s[26:27], vcc')
    k(f'ds_write_b32 v{T+1}, v{T+2} offset:{lds+256}')
    k('s_mov_b64 exec, s[26:27]')
    k('s_waitcnt lgkmcnt(0)')


def tr_addr(k, d):
    k('v_lshrrev_b32 v2, 4, v0')
    k('v_bfe_u32 v3, v0, 2, 2')
    k('v_lshl_add_u32 v2, v2, 3, v3')
    k('v_and_b32 v3, 3, v0')
    k('v_lshlrev_b32 v3, 3, v3')
    k(f'v_lshl_add_u32 v{d}, v2, 5, v3')


def build_moe1():
    k = Kern('mo1')
    k('s_and_b32 s20, s2, 7')
    k('s_lshl_b32 s20, s20, 4')
    k('s_lshr_b32 s21, s2, 3')
    k('s_add_u32 s20, s20, s21')
    k('s_cmp_ge_u32 s2, 128')
    k('s_cbranch_scc1 mo1_end')
    k('s_cmp_ge_u32 s20, 108')
    k('s_cbranch_scc1 mo1_end')
    k(f's_load_dwordx4 s[4:7], s[0:1], {ARG["wg"]}')
    k(f's_load_dwordx2 s[8:9], s[0:1], {ARG["ws"]}')
    k('v_mov_b32 v1, v0')
    k('v_lshrrev_b32 v2, 6, v0')
    k('v_readfirstlane_b32 s22, v2')
    k('v_and_b32 v0, 63, v0')
    k('v_lshrrev_b32 v2, 1, v0')
    k('v_mul_u32_u24 v2, 3456, v2')
    k('v_and_b32 v3, 1, v0')
    k('v_lshl_add_u32 v4, v3, 4, v2')
    k('v_lshlrev_b32 v5, 5, v1')
    tr_addr(k, 6)
    k('s_mul_i32 s23, s22, 10240')
    k('v_add_u32 v6, s23, v6')
    k(f's_mul_i32 s24, s22, {160*3456}')
    k('s_lshl_b32 s25, s20, 5')
    k('s_add_u32 s24, s24, s25')
    k('s_waitcnt lgkmcnt(0)')
    srd(k, 12, 4, SIZE['wg'])
    srd(k, 16, 6, SIZE['wu'])
    srd(k, 28, 8, 8192, WS['r'])
    srd(k, 32, 8, SIZE['out'], WS['h2'])
    srd(k, 36, 8, 1 << 20, WS['moe'])
    k(f'buffer_load_dwordx4 {vr(8)}, v5, s[28:31], 0 offen')
    k(f'buffer_load_dwordx4 {vr(12)}, v5, s[28:31], 0 offen offset:16')
    for m in range(2):
        for i in range(5):
            k(f's_add_u32 m0, s23, {m*5120 + i*1024}')
            k(f's_add_u32 s25, s24, {i*32*3456}')
            k(f'buffer_load_dwordx4 v4, s[{12+4*m}:{15+4*m}], s25 offen lds')
    k('s_waitcnt vmcnt(10)')
    LT = 40960
    topk(k, 8, 16, LT)
    k('v_and_b32 v2, 7, v0')
    k('v_lshlrev_b32 v2, 2, v2')
    k(f'ds_read_b32 v7, v2 offset:{LT+256}')
    k('s_waitcnt lgkmcnt(0)')
    k('v_and_b32 v3, 2047, v7')
    k('v_sub_u32 v3, 2047, v3')
    k('v_mul_u32_u24 v3, 1280, v3')
    k('v_lshrrev_b32 v8, 4, v0')
    k('v_lshl_add_u32 v3, v8, 4, v3')
    k('s_mul_i32 s25, s22, 320')
    for i in range(5):
        k(f'buffer_load_dwordx4 {vr(32+4*i)}, v3, s[32:35], s25 offen offset:{i*64}')
    k('s_waitcnt vmcnt(5)')
    for m in range(2):
        for i in range(5):
            for t in range(2):
                r = 56 + (m * 5 + i) * 4 + 2 * t
                k(f'ds_read_b64_tr_b16 v[{r}:{r+1}], v6 offset:{m*5120 + i*1024 + t*128}')
    k('s_waitcnt vmcnt(0) lgkmcnt(0)')
    for i in range(5):
        for m in range(2):
            acc = 96 + 4 * m
            k(f'v_mfma_f32_16x16x32_bf16 {vr(acc)}, {vr(56 + (m*5+i)*4)}, {vr(32+4*i)}, {"0" if i == 0 else vr(acc)}')
    LR = 41984
    k('s_lshl_b32 s25, s22, 11')
    k('v_lshlrev_b32 v9, 4, v0')
    k('v_add_u32 v10, s25, v9')
    k(f'ds_write_b128 v10, {vr(96)} offset:{LR}')
    k(f'ds_write_b128 v10, {vr(100)} offset:{LR+1024}')
    k('s_waitcnt lgkmcnt(0)')
    k('s_barrier')
    k('s_cmp_lg_u32 s22, 0')
    k('s_cbranch_scc1 mo1_end')
    for w in range(1, 4):
        for m in range(2):
            k(f'ds_read_b128 {vr(32 + (w-1)*8 + m*4)}, v9 offset:{LR + w*2048 + m*1024}')
    k('s_waitcnt lgkmcnt(0)')
    for w in range(1, 4):
        for e in range(8):
            k(f'v_add_f32 v{96+e}, v{96+e}, v{32+(w-1)*8+e}')
    rnd(k, list(range(96, 104)), 16)
    k(f's_mov_b32 s25, {f32hex(-1.4426950408889634)}')
    for e in range(4):
        k(f'v_mul_f32 v{16+e}, s25, v{96+e}')
        k(f'v_exp_f32 v{16+e}, v{16+e}')
        k(f'v_add_f32 v{16+e}, 1.0, v{16+e}')
        k(f'v_rcp_f32 v{16+e}, v{16+e}')
        k(f'v_mul_f32 v{96+e}, v{96+e}, v{16+e}')
    rnd(k, list(range(96, 100)), 16)
    for e in range(4):
        k(f'v_mul_f32 v{96+e}, v{96+e}, v{100+e}')
    k('v_cvt_pk_bf16_f32 v16, v96, v97')
    k('v_cvt_pk_bf16_f32 v17, v98, v99')
    k('v_and_b32 v2, 15, v0')
    k('v_mul_u32_u24 v3, 3456, v2')
    k('v_lshl_add_u32 v3, v8, 3, v3')
    k('s_lshl_b32 s25, s20, 5')
    k('v_lshlrev_b32 v11, 2, v0')
    k('v_cmp_gt_u32 vcc, 8, v2')
    k('s_and_saveexec_b64 s[26:27], vcc')
    k('buffer_store_dwordx2 v[16:17], v3, s[36:39], s25 offen')
    k('s_cmp_lg_u32 s20, 0')
    k('s_cbranch_scc1 mo1_end')
    k('v_cmp_gt_u32 vcc, 8, v0')
    k('s_and_b64 exec, exec, vcc')
    k('s_mov_b32 s25, 65536')
    k('buffer_store_dword v7, v11, s[36:39], s25 offen')
    k.label('mo1_end')
    return k, 128, 256, 41984 + 8192, 104


def build_moe2():
    k = Kern('mo2')
    k('s_and_b32 s20, s2, 7')
    k('s_lshl_b32 s20, s20, 3')
    k('s_lshr_b32 s21, s2, 3')
    k('s_add_u32 s20, s20, s21')
    k('s_cmp_ge_u32 s2, 64')
    k('s_cbranch_scc1 mo2_end')
    k('s_cmp_ge_u32 s20, 40')
    k('s_cbranch_scc1 mo2_end')
    k(f's_load_dwordx2 s[4:5], s[0:1], {ARG["wd"]}')
    k(f's_load_dwordx2 s[6:7], s[0:1], {ARG["out"]}')
    k(f's_load_dwordx2 s[8:9], s[0:1], {ARG["ws"]}')
    k('v_lshrrev_b32 v2, 6, v0')
    k('v_readfirstlane_b32 s22, v2')
    k('v_and_b32 v0, 63, v0')
    k('v_lshrrev_b32 v2, 1, v0')
    k('v_mul_u32_u24 v2, 1280, v2')
    k('v_and_b32 v3, 1, v0')
    k('v_lshl_add_u32 v4, v3, 4, v2')
    tr_addr(k, 6)
    k('s_mul_i32 s23, s22, 9216')
    k('v_add_u32 v6, s23, v6')
    k(f's_mul_i32 s24, s22, {288*1280}')
    k('s_lshl_b32 s25, s20, 5')
    k('s_add_u32 s24, s24, s25')
    k('v_and_b32 v2, 7, v0')
    k('v_lshlrev_b32 v5, 2, v2')
    k('v_mul_u32_u24 v3, 3456, v2')
    k('v_lshrrev_b32 v8, 4, v0')
    k('v_lshl_add_u32 v3, v8, 4, v3')
    k('v_lshlrev_b32 v9, 4, v8')
    k('s_waitcnt lgkmcnt(0)')
    srd(k, 12, 4, SIZE['wd'])
    srd(k, 16, 6, SIZE['out'])
    srd(k, 28, 8, 3840 * 4, WS['modp'])
    srd(k, 32, 8, SIZE['out'], WS['h2'])
    srd(k, 36, 8, 1 << 20, WS['moe'])
    srd(k, 40, 8, SIZE['out'], WS['x1'])
    k('s_mov_b32 s25, 65536')
    k('buffer_load_dword v7, v5, s[36:39], s25 offen')
    for i in range(9):
        k(f's_add_u32 m0, s23, {i*1024}')
        k(f's_add_u32 s25, s24, {i*32*1280}')
        k('buffer_load_dwordx4 v4, s[12:15], s25 offen lds')
    k('s_mul_i32 s25, s22, 576')
    for i in range(9):
        k(f'buffer_load_dwordx4 {vr(32+4*i)}, v3, s[36:39], s25 offen offset:{i*64}')
    k('s_lshl_b32 s25, s20, 6')
    k(f's_add_u32 s25, s25, {5*2560}')
    k(f'buffer_load_dwordx4 {vr(20)}, v9, s[28:31], s25 offen')
    k('s_waitcnt vmcnt(19)')
    k('v_and_b32 v10, 2047, v7')
    k('v_sub_u32 v10, 2047, v10')
    k('v_mul_u32_u24 v10, 1280, v10')
    k('v_lshl_add_u32 v10, v8, 3, v10')
    k('s_lshl_b32 s21, s20, 5')
    k('buffer_load_dwordx2 v[24:25], v10, s[32:35], s21 offen')
    k('buffer_load_dwordx2 v[26:27], v10, s[40:43], s21 offen')
    k('s_waitcnt vmcnt(12)')
    for i in range(9):
        for t in range(2):
            r = 68 + i * 4 + 2 * t
            k(f'ds_read_b64_tr_b16 v[{r}:{r+1}], v6 offset:{i*1024 + t*128}')
    k('s_waitcnt vmcnt(3) lgkmcnt(0)')
    for i in range(9):
        k(f'v_mfma_f32_16x16x32_bf16 {vr(104)}, {vr(68 + i*4)}, {vr(32+4*i)}, {"0" if i == 0 else vr(104)}')
    LR = 6 * 9216
    k('s_lshl_b32 s25, s22, 10')
    k('v_lshlrev_b32 v11, 4, v0')
    k('v_add_u32 v12, s25, v11')
    k(f'ds_write_b128 v12, {vr(104)} offset:{LR}')
    k('s_waitcnt lgkmcnt(0)')
    k('s_barrier')
    k('s_cmp_lg_u32 s22, 0')
    k('s_cbranch_scc1 mo2_end')
    for w in range(1, 6):
        k(f'ds_read_b128 {vr(32 + (w-1)*4)}, v11 offset:{LR + w*1024}')
    k('v_and_b32 v13, 0xffff0000, v7')
    k('v_ashrrev_i32 v14, 31, v13')
    k('v_not_b32 v14, v14')
    k('v_or_b32 v14, 0x80000000, v14')
    k('v_xor_b32 v13, v13, v14')
    k('v_and_b32 v13, 0xffff0000, v13')
    k(f'v_mul_f32 v13, {f32hex(-1.4426950408889634)}, v13')
    k('v_exp_f32 v13, v13')
    k('v_add_f32 v13, 1.0, v13')
    k('v_rcp_f32 v13, v13')
    rnd1(k, 13)
    k('s_waitcnt vmcnt(0) lgkmcnt(0)')
    for w in range(1, 6):
        for e in range(4):
            k(f'v_add_f32 v{104+e}, v{104+e}, v{32+(w-1)*4+e}')
    Y = list(range(104, 108))
    rnd(k, Y, 16)
    for e in range(4):
        k(f'v_mul_f32 v{104+e}, v{104+e}, v13')
    rnd(k, Y, 16)
    unpack(k, 32, 24, 4)
    for e in range(4):
        k(f'v_add_f32 v{104+e}, v{104+e}, v{32+e}')
    rnd(k, Y, 16)
    for e in range(4):
        k(f'v_mul_f32 v{104+e}, v{104+e}, v{20+e}')
    rnd(k, Y, 16)
    for e in range(4):
        k(f'v_add_f32 v{104+e}, v{104+e}, v{36+e}')
    k('v_cvt_pk_bf16_f32 v16, v104, v105')
    k('v_cvt_pk_bf16_f32 v17, v106, v107')
    k('v_and_b32 v2, 15, v0')
    k('v_cmp_gt_u32 vcc, 8, v2')
    k('s_and_saveexec_b64 s[26:27], vcc')
    k('buffer_store_dwordx2 v[16:17], v10, s[16:19], s21 offen')
    k.label('mo2_end')
    return k, 64, 384, 6 * 9216 + 6144, 108


def build_moe2b():
    k = Kern('mo2')
    k('s_and_b32 s20, s2, 7')
    k('s_lshl_b32 s20, s20, 3')
    k('s_lshr_b32 s21, s2, 3')
    k('s_add_u32 s20, s20, s21')
    k('s_cmp_ge_u32 s2, 64')
    k('s_cbranch_scc1 mo2_end')
    k('s_cmp_ge_u32 s20, 40')
    k('s_cbranch_scc1 mo2_end')
    k(f's_load_dwordx2 s[4:5], s[0:1], {ARG["wd"]}')
    k(f's_load_dwordx2 s[6:7], s[0:1], {ARG["out"]}')
    k(f's_load_dwordx2 s[8:9], s[0:1], {ARG["ws"]}')
    k('v_lshrrev_b32 v2, 6, v0')
    k('v_readfirstlane_b32 s22, v2')
    k('v_and_b32 v0, 63, v0')
    k('v_lshrrev_b32 v2, 1, v0')
    k('v_mul_u32_u24 v2, 1280, v2')
    k('v_and_b32 v3, 1, v0')
    k('v_lshl_add_u32 v4, v3, 4, v2')
    tr_addr(k, 6)
    k('s_mul_i32 s23, s22, 9216')
    k('v_add_u32 v6, s23, v6')
    k(f's_mul_i32 s24, s22, {288*1280}')
    k('s_lshl_b32 s25, s20, 5')
    k('s_add_u32 s24, s24, s25')
    k('v_and_b32 v2, 7, v0')
    k('v_lshlrev_b32 v5, 2, v2')
    k('v_mul_u32_u24 v3, 3456, v2')
    k('v_lshrrev_b32 v8, 4, v0')
    k('v_lshl_add_u32 v3, v8, 4, v3')
    k('v_lshlrev_b32 v9, 3, v8')
    k('s_waitcnt lgkmcnt(0)')
    srd(k, 12, 4, SIZE['wd'])
    srd(k, 16, 6, SIZE['out'])
    srd(k, 28, 8, 3840 * 2, WS['modp'])
    srd(k, 32, 8, SIZE['out'], WS['h2'])
    srd(k, 36, 8, 1 << 20, WS['moe'])
    srd(k, 40, 8, SIZE['out'], WS['x1'])
    k('s_mov_b32 s25, 65536')
    k('buffer_load_dword v7, v5, s[36:39], s25 offen')
    for i in range(9):
        k(f's_add_u32 m0, s23, {i*1024}')
        k(f's_add_u32 s25, s24, {i*32*1280}')
        k('buffer_load_dwordx4 v4, s[12:15], s25 offen lds')
    k('s_mul_i32 s25, s22, 576')
    for i in range(9):
        k(f'buffer_load_dwordx4 {vr(32+4*i)}, v3, s[36:39], s25 offen offset:{i*64}')
    k('s_lshl_b32 s25, s20, 5')
    k(f's_add_u32 s25, s25, {5*1280}')
    k(f'buffer_load_dwordx2 v[28:29], v9, s[28:31], s25 offen')
    k('s_waitcnt vmcnt(19)')
    k('v_and_b32 v10, 2047, v7')
    k('v_sub_u32 v10, 2047, v10')
    k('v_mul_u32_u24 v10, 1280, v10')
    k('v_lshl_add_u32 v10, v8, 3, v10')
    k('s_lshl_b32 s21, s20, 5')
    k('buffer_load_dwordx2 v[24:25], v10, s[32:35], s21 offen')
    k('buffer_load_dwordx2 v[26:27], v10, s[40:43], s21 offen')
    k('s_waitcnt vmcnt(12)')
    for i in range(9):
        for t in range(2):
            r = 68 + i * 4 + 2 * t
            k(f'ds_read_b64_tr_b16 v[{r}:{r+1}], v6 offset:{i*1024 + t*128}')
    k('s_waitcnt vmcnt(3) lgkmcnt(0)')
    for i in range(9):
        k(f'v_mfma_f32_16x16x32_bf16 {vr(104)}, {vr(68 + i*4)}, {vr(32+4*i)}, {"0" if i == 0 else vr(104)}')
    LR = 6 * 9216
    k('s_lshl_b32 s25, s22, 10')
    k('v_lshlrev_b32 v11, 4, v0')
    k('v_add_u32 v12, s25, v11')
    k(f'ds_write_b128 v12, {vr(104)} offset:{LR}')
    k('s_waitcnt lgkmcnt(0)')
    k('s_barrier')
    k('s_cmp_lg_u32 s22, 0')
    k('s_cbranch_scc1 mo2_end')
    for w in range(1, 6):
        k(f'ds_read_b128 {vr(32 + (w-1)*4)}, v11 offset:{LR + w*1024}')
    k('v_and_b32 v13, 0xffff0000, v7')
    k('v_ashrrev_i32 v14, 31, v13')
    k('v_not_b32 v14, v14')
    k('v_or_b32 v14, 0x80000000, v14')
    k('v_xor_b32 v13, v13, v14')
    k('v_and_b32 v13, 0xffff0000, v13')
    k(f'v_mul_f32 v13, {f32hex(-1.4426950408889634)}, v13')
    k('v_exp_f32 v13, v13')
    k('v_add_f32 v13, 1.0, v13')
    k('v_rcp_f32 v13, v13')
    rnd1(k, 13)
    k('s_waitcnt vmcnt(0) lgkmcnt(0)')
    for w in range(1, 6):
        for e in range(4):
            k(f'v_add_f32 v{104+e}, v{104+e}, v{32+(w-1)*4+e}')
    Y = list(range(104, 108))
    rnd(k, Y, 16)
    for e in range(4):
        k(f'v_mul_f32 v{104+e}, v{104+e}, v13')
    rnd(k, Y, 16)
    unpack(k, 32, 24, 4)
    unpack(k, 20, 28, 2)
    for e in range(4):
        k(f'v_add_f32 v{104+e}, v{104+e}, v{32+e}')
    rnd(k, Y, 16)
    for e in range(4):
        k(f'v_mul_f32 v{104+e}, v{104+e}, v{20+e}')
    rnd(k, Y, 16)
    for e in range(4):
        k(f'v_add_f32 v{104+e}, v{104+e}, v{36+e}')
    k('v_cvt_pk_bf16_f32 v16, v104, v105')
    k('v_cvt_pk_bf16_f32 v17, v106, v107')
    k('v_and_b32 v2, 15, v0')
    k('v_cmp_gt_u32 vcc, 8, v2')
    k('s_and_saveexec_b64 s[26:27], vcc')
    k('buffer_store_dwordx2 v[16:17], v10, s[16:19], s21 offen')
    k.label('mo2_end')
    return k, 64, 384, 6 * 9216 + 6144, 108
```

```python
from asmgen import *
import asmgen
import struct


def f32hex(x):
    return hex(struct.unpack('<I', struct.pack('<f', x))[0])


def vr(b, n=4):
    return f'v[{b}:{b+n-1}]'


def unpack(k, dst, src, n):
    for i in range(n):
        k(f'v_lshlrev_b32 v{dst+2*i}, 16, v{src+i}')
        k(f'v_and_b32 v{dst+2*i+1}, 0xffff0000, v{src+i}')


def rnd(k, regs, tmp):
    for i in range(0, len(regs), 2):
        k(f'v_cvt_pk_bf16_f32 v{tmp}, v{regs[i]}, v{regs[i+1]}')
        k(f'v_lshlrev_b32 v{regs[i]}, 16, v{tmp}')
        k(f'v_and_b32 v{regs[i+1]}, 0xffff0000, v{tmp}')


def rnd1(k, r):
    k(f'v_cvt_pk_bf16_f32 v{r}, v{r}, v{r}')
    k(f'v_lshlrev_b32 v{r}, 16, v{r}')


def swapsum(k, regs, tmps, which=('32', '16'), op='v_add_f32'):
    for w in which:
        for r, t in zip(regs, tmps):
            k(f'v_mov_b32 v{t}, v{r}')
        for r, t in zip(regs, tmps):
            k(f'v_permlane{w}_swap_b32 v{r}, v{t}')
        for r, t in zip(regs, tmps):
            k(f'{op} v{r}, v{r}, v{t}')


def build_mod():
    k = Kern('mod')
    k('s_and_b32 s20, s2, 7')
    k('s_lshl_b32 s20, s20, 5')
    k('s_lshr_b32 s21, s2, 3')
    k('s_add_u32 s20, s20, s21')
    k('s_cmp_ge_u32 s2, 256')
    k('s_cbranch_scc1 mod_end')
    k('s_cmp_ge_u32 s20, 240')
    k('s_cbranch_scc1 mod_end')
    k(f's_load_dwordx4 s[4:7], s[0:1], {ARG["c"]}')
    k(f's_load_dwordx2 s[8:9], s[0:1], {ARG["ws"]}')
    k('v_lshrrev_b32 v1, 1, v0')
    k('v_and_b32 v2, 1, v0')
    k('s_movk_i32 s22, 7680')
    k('v_mul_lo_u32 v3, v1, s22')
    k('v_lshl_add_u32 v3, v2, 4, v3')
    k('v_lshlrev_b32 v4, 1, v1')
    k('s_lshl_b32 s23, s20, 5')
    k('s_waitcnt lgkmcnt(0)')
    srd(k, 12, 4, SIZE['c'])
    srd(k, 16, 6, SIZE['wmod'])
    srd(k, 24, 8, 3840 * 4, WS['modp'])
    for i in range(5):
        k(f'buffer_load_ushort v{8+i}, v4, s[12:15], 0 offen offset:{i*256}')
    for i in range(5):
        k(f's_add_u32 s22, s23, {i*128*7680}')
        k(f'buffer_load_dwordx4 {vr(16+4*i)}, v3, s[16:19], s22 offen')
    k('s_waitcnt vmcnt(5)')
    k(f's_mov_b32 s22, {f32hex(-1.4426950408889634)}')
    for i in range(5):
        k(f'v_lshlrev_b32 v{8+i}, 16, v{8+i}')
        k(f'v_mul_f32 v{40+i}, s22, v{8+i}')
        k(f'v_exp_f32 v{40+i}, v{40+i}')
        k(f'v_add_f32 v{40+i}, 1.0, v{40+i}')
        k(f'v_rcp_f32 v{40+i}, v{40+i}')
        k(f'v_mul_f32 v{8+i}, v{8+i}, v{40+i}')
        rnd1(k, 8 + i)
    for i in range(5):
        k(f's_waitcnt vmcnt({4-i})')
        unpack(k, 40, 16 + 4 * i, 4)
        for e in range(8):
            if i == 0:
                k(f'v_mul_f32 v{48+e}, v{8+i}, v{40+e}')
            else:
                k(f'v_fmac_f32 v{48+e}, v{8+i}, v{40+e}')
    for sh in (2, 4, 8):
        for e in range(8):
            k(f'v_add_f32_dpp v{48+e}, v{48+e}, v{48+e} row_ror:{sh} row_mask:0xf bank_mask:0xf')
    swapsum(k, list(range(48, 56)), list(range(40, 48)))
    k('v_lshrrev_b32 v1, 6, v0')
    k('v_lshlrev_b32 v1, 6, v1')
    k('v_lshl_add_u32 v1, v2, 5, v1')
    k('v_and_b32 v5, 62, v0')
    k('v_cmp_eq_u32 vcc, 0, v5')
    k('s_and_saveexec_b64 s[28:29], vcc')
    k(f'ds_write_b128 v1, {vr(48)}')
    k(f'ds_write_b128 v1, {vr(52)} offset:16')
    k('s_mov_b64 exec, s[28:29]')
    k('s_waitcnt lgkmcnt(0)')
    k('s_barrier')
    k('v_lshlrev_b32 v1, 2, v0')
    k('v_cmp_gt_u32 vcc, 16, v0')
    k('s_and_saveexec_b64 s[28:29], vcc')
    k('s_cbranch_execz mod_end')
    for i in range(4):
        k(f'ds_read_b32 v{8+i}, v1 offset:{i*64}')
    k('s_waitcnt lgkmcnt(0)')
    k('v_add_f32 v8, v8, v9')
    k('v_add_f32 v10, v10, v11')
    k('v_add_f32 v8, v8, v10')
    rnd1(k, 8)
    k('s_lshl_b32 s23, s20, 6')
    k('buffer_store_dword v8, v1, s[24:27], s23 offen')
    k.label('mod_end')
    return k, 256, 256, 256, 64


def row_setup(k):
    k('v_lshrrev_b32 v1, 6, v0')
    k('v_readfirstlane_b32 s22, v1')
    k('v_and_b32 v0, 63, v0')
    k('v_and_b32 v1, 7, v0')
    k('v_bfe_u32 v6, v0, 3, 2')
    k('v_lshrrev_b32 v7, 5, v0')
    k('s_lshl_b32 s25, s22, 2')
    k('v_add_u32 v7, s25, v7')
    k('v_lshlrev_b32 v2, 6, v7')
    k('v_lshl_add_u32 v2, v6, 4, v2')
    k('s_movk_i32 s25, 1280')
    k('v_mad_u32_u24 v3, v1, s25, v2')
    k('s_and_b32 s25, s2, 1')
    k('s_lshl_b32 s25, s25, 3')
    k('v_lshl_add_u32 v4, v6, 4, v1')
    k('v_add_u32 v4, s25, v4')
    k('v_lshlrev_b32 v4, 4, v4')
    k('v_lshl_add_u32 v4, v7, 10, v4')
    k('v_lshlrev_b32 v5, 5, v1')
    k('s_mul_i32 s23, s2, 10240')
    k('s_lshr_b32 s24, s2, 1')
    k('s_mul_i32 s24, s24, 20480')
    k('s_lshl_b32 s26, s22, 2')
    k('v_add_u32 v6, s26, v5')


def row_reduce(k, r, t, ldsoff):
    k(f'v_add_f32_dpp v{r}, v{r}, v{r} row_ror:8 row_mask:0xf bank_mask:0xf')
    swapsum(k, [r], [t])
    k(f'ds_write_b32 v6, v{r} offset:{ldsoff}')
    k('s_waitcnt lgkmcnt(0)')
    k('s_barrier')
    k(f'ds_read_b128 {vr(t)}, v5 offset:{ldsoff}')
    k(f'ds_read_b32 v{t+4}, v5 offset:{ldsoff+16}')
    k('s_waitcnt lgkmcnt(0)')
    k(f'v_add_f32 v{t}, v{t}, v{t+1}')
    k(f'v_add_f32 v{t+2}, v{t+2}, v{t+3}')
    k(f'v_add_f32 v{t}, v{t}, v{t+4}')
    k(f'v_add_f32 v{r}, v{t}, v{t+2}')


def layernorm_mod(k, X, D, C, S, T, ldsoff, addone=True):
    a = T + 6
    k(f'v_add_f32 v{a}, v{X}, v{X+1}')
    k(f'v_add_f32 v{T+7}, v{X+2}, v{X+3}')
    for i in range(4, 16, 2):
        k(f'v_add_f32 v{a}, v{a}, v{X+i}')
        k(f'v_add_f32 v{T+7}, v{T+7}, v{X+i+1}')
    k(f'v_add_f32 v{a}, v{a}, v{T+7}')
    row_reduce(k, a, T, ldsoff)
    k(f'v_mul_f32 v{a}, {f32hex(1.0/640)}, v{a}')
    b = T + 7
    for i in range(16):
        k(f'v_sub_f32 v{D+i}, v{X+i}, v{a}')
    k(f'v_mul_f32 v{b}, v{D}, v{D}')
    for i in range(1, 16):
        k(f'v_fmac_f32 v{b}, v{D+i}, v{D+i}')
    row_reduce(k, b, T, ldsoff + 256)
    k(f'v_mul_f32 v{b}, {f32hex(1.0/640)}, v{b}')
    rnd1(k, b)
    rnd1(k, a)
    k(f'v_add_f32 v{b}, {f32hex(1e-5)}, v{b}')
    rnd1(k, b)
    k(f'v_sqrt_f32 v{b}, v{b}')
    rnd1(k, b)
    k(f'v_rcp_f32 v{b}, v{b}')
    for i in range(16):
        k(f'v_sub_f32 v{D+i}, v{X+i}, v{a}')
    rnd(k, list(range(D, D + 16)), T)
    for i in range(16):
        k(f'v_mul_f32 v{D+i}, v{D+i}, v{b}')
    rnd(k, list(range(D, D + 16)), T)
    if addone:
        for i in range(16):
            k(f'v_add_f32 v{C+i}, 1.0, v{C+i}')
        rnd(k, list(range(C, C + 16)), T)
    for i in range(16):
        k(f'v_mul_f32 v{D+i}, v{D+i}, v{C+i}')
    rnd(k, list(range(D, D + 16)), T)
    for i in range(16):
        k(f'v_add_f32 v{D+i}, v{D+i}, v{S+i}')


def load_mod(k, dst, idx, srdn):
    for s in range(2):
        for hh in range(2):
            off = idx * 2560 + s * 256 + hh * 16
            k(f's_movk_i32 s27, {off}')
            k(f'buffer_load_dwordx4 {vr(dst + s*8 + hh*4)}, v7, s[{srdn}:{srdn+3}], s27 offen')


def load_modb(k, dst, idx, srdn):
    k(f's_movk_i32 s27, {idx*1280}')
    for s in range(2):
        k(f'buffer_load_dwordx4 {vr(dst + 8 + s*4)}, v2, s[{srdn}:{srdn+3}], s27 offen offset:{s*128}')


def build_h():
    k = Kern('hk')
    k('s_cmp_ge_u32 s2, 256')
    k('s_cbranch_scc1 hk_end')
    k(f's_load_dwordx2 s[4:5], s[0:1], {ARG["x"]}')
    k(f's_load_dwordx2 s[8:9], s[0:1], {ARG["ws"]}')
    row_setup(k)
    k('v_lshlrev_b32 v7, 1, v2')
    k('s_waitcnt lgkmcnt(0)')
    srd(k, 12, 4, SIZE['x'])
    srd(k, 16, 8, 3840 * 4, WS['modp'])
    srd(k, 28, 8, 128 * 20480, WS['h'])
    k(f'buffer_load_dwordx4 {vr(8)}, v3, s[12:15], s23 offen')
    k(f'buffer_load_dwordx4 {vr(12)}, v3, s[12:15], s23 offen offset:128')
    load_mod(k, 64, 0, 16)
    load_mod(k, 48, 1, 16)
    k('s_waitcnt vmcnt(8)')
    unpack(k, 16, 8, 8)
    k('s_waitcnt vmcnt(0)')
    layernorm_mod(k, 16, 32, 48, 64, 80, 0)
    for i in range(8):
        k(f'v_cvt_pk_bf16_f32 v{8+i}, v{32+2*i}, v{33+2*i}')
    k(f'buffer_store_dwordx4 {vr(8)}, v4, s[28:31], s24 offen')
    k(f'buffer_store_dwordx4 {vr(12)}, v4, s[28:31], s24 offen offset:2048')
    k.label('hk_end')
    return k, 256, 320, 1024, 88


NSPLIT = 8
PSTRIDE = 128 * 20480


def build_fin():
    k = Kern('fin')
    k('s_cmp_ge_u32 s2, 256')
    k('s_cbranch_scc1 fin_end')
    k(f's_load_dwordx2 s[4:5], s[0:1], {ARG["x"]}')
    k(f's_load_dwordx2 s[6:7], s[0:1], {ARG["wr"]}')
    k(f's_load_dwordx2 s[8:9], s[0:1], {ARG["ws"]}')
    k(f's_load_dwordx2 s[10:11], s[0:1], {ARG["out"]}')
    row_setup(k)
    k('v_lshlrev_b32 v7, 1, v2')
    k('s_waitcnt lgkmcnt(0)')
    srd(k, 12, 4, SIZE['x'])
    srd(k, 16, 8, 3840 * 4, WS['modp'])
    srd(k, 28, 8, NSPLIT * PSTRIDE, WS['part'])
    srd(k, 32, 6, SIZE['wr'])
    srd(k, 36, 10, SIZE['out'])
    srd(k, 40, 8, SIZE['out'], WS['h2'])
    srd(k, 44, 8, SIZE['out'], WS['x1'])
    srd(k, 48, 8, 8192, WS['r'])
    P = 96
    for p in range(NSPLIT):
        k(f's_add_u32 s27, s24, {p*PSTRIDE}')
        k(f'buffer_load_dwordx4 {vr(P+8*p)}, v4, s[28:31], s27 offen')
        k(f'buffer_load_dwordx4 {vr(P+8*p+4)}, v4, s[28:31], s27 offen offset:2048')
    k(f'buffer_load_dwordx4 {vr(8)}, v3, s[12:15], s23 offen')
    k(f'buffer_load_dwordx4 {vr(12)}, v3, s[12:15], s23 offen offset:128')
    load_mod(k, 160, 2, 16)
    load_mod(k, 64, 3, 16)
    load_mod(k, 48, 4, 16)
    load_mod(k, 176, 5, 16)
    k(f'buffer_load_dwordx4 {vr(88)}, v2, s[32:35], 0 offen')
    k(f'buffer_load_dwordx4 {vr(92)}, v2, s[32:35], 0 offen offset:128')
    A = 32
    nl = 2 * NSPLIT + 2 + 16 + 2
    for p in range(NSPLIT):
        k(f's_waitcnt vmcnt({nl - 2*(p+1)})')
        if p == 0:
            unpack(k, A, P, 8)
        else:
            unpack(k, 16, P + 8 * p, 8)
            for i in range(16):
                k(f'v_add_f32 v{A+i}, v{A+i}, v{16+i}')
    T = 80
    rnd(k, list(range(A, A + 16)), T)
    k('s_waitcnt vmcnt(14)')
    unpack(k, 16, 8, 8)
    for i in range(16):
        k(f'v_mul_f32 v{A+i}, v{A+i}, v{160+i}')
    rnd(k, list(range(A, A + 16)), T)
    for i in range(16):
        k(f'v_add_f32 v{16+i}, v{16+i}, v{A+i}')
    for i in range(8):
        k(f'v_cvt_pk_bf16_f32 v{8+i}, v{16+2*i}, v{17+2*i}')
    unpack(k, 16, 8, 8)
    k(f'buffer_store_dwordx4 {vr(8)}, v3, s[44:47], s23 offen')
    k(f'buffer_store_dwordx4 {vr(12)}, v3, s[44:47], s23 offen offset:128')
    k('s_waitcnt vmcnt(2)')
    layernorm_mod(k, 16, 32, 48, 64, T, 0)
    for i in range(8):
        k(f'v_cvt_pk_bf16_f32 v{96+i}, v{32+2*i}, v{33+2*i}')
    unpack(k, 32, 96, 8)
    k(f'buffer_store_dwordx4 {vr(96)}, v3, s[40:43], s23 offen')
    k(f'buffer_store_dwordx4 {vr(100)}, v3, s[40:43], s23 offen offset:128')
    unpack(k, 48, 88, 8)
    k(f'v_mul_f32 v{T+6}, v32, v48')
    for i in range(1, 16):
        k(f'v_fmac_f32 v{T+6}, v{32+i}, v{48+i}')
    for i in range(16):
        k(f'v_mul_f32 v{64+i}, v{32+i}, v{176+i}')
    rnd(k, list(range(64, 80)), T)
    for i in range(16):
        k(f'v_add_f32 v{64+i}, v{64+i}, v{16+i}')
    for i in range(8):
        k(f'v_cvt_pk_bf16_f32 v{104+i}, v{64+2*i}, v{65+2*i}')
    k(f'buffer_store_dwordx4 {vr(104)}, v3, s[36:39], s23 offen')
    k(f'buffer_store_dwordx4 {vr(108)}, v3, s[36:39], s23 offen offset:128')
    row_reduce(k, T + 6, T, 512)
    rnd1(k, T + 6)
    k('s_cmp_lg_u32 s22, 0')
    k('s_cbranch_scc1 fin_end')
    k('v_lshlrev_b32 v1, 2, v0')
    k('s_lshl_b32 s27, s2, 5')
    k('v_cmp_gt_u32 vcc, 8, v0')
    k('s_and_saveexec_b64 s[52:53], vcc')
    k(f'buffer_store_dword v{T+6}, v1, s[48:51], s27 offen')
    k.label('fin_end')
    return k, 256, 320, 1024, 192


def build_fin2():
    k = Kern('fin')
    k('s_cmp_ge_u32 s2, 256')
    k('s_cbranch_scc1 fin_end')
    k(f's_load_dwordx2 s[4:5], s[0:1], {ARG["x"]}')
    k(f's_load_dwordx2 s[6:7], s[0:1], {ARG["wr"]}')
    k(f's_load_dwordx2 s[8:9], s[0:1], {ARG["ws"]}')
    k(f's_load_dwordx2 s[10:11], s[0:1], {ARG["out"]}')
    row_setup(k)
    k('v_lshlrev_b32 v7, 1, v2')
    k('s_waitcnt lgkmcnt(0)')
    srd(k, 12, 4, SIZE['x'])
    srd(k, 16, 8, 3840 * 2, WS['modp'])
    srd(k, 28, 8, NSPLIT * PSTRIDE, WS['part'])
    srd(k, 32, 6, SIZE['wr'])
    srd(k, 36, 10, SIZE['out'])
    srd(k, 40, 8, SIZE['out'], WS['h2'])
    srd(k, 44, 8, SIZE['out'], WS['x1'])
    srd(k, 48, 8, 8192, WS['r'])
    P = 96
    for p in range(NSPLIT):
        k(f's_add_u32 s27, s24, {p*PSTRIDE}')
        k(f'buffer_load_dwordx4 {vr(P+8*p)}, v4, s[28:31], s27 offen')
        k(f'buffer_load_dwordx4 {vr(P+8*p+4)}, v4, s[28:31], s27 offen offset:2048')
    k(f'buffer_load_dwordx4 {vr(8)}, v3, s[12:15], s23 offen')
    k(f'buffer_load_dwordx4 {vr(12)}, v3, s[12:15], s23 offen offset:128')
    load_modb(k, 160, 2, 16)
    load_modb(k, 64, 3, 16)
    load_modb(k, 48, 4, 16)
    load_modb(k, 176, 5, 16)
    k(f'buffer_load_dwordx4 {vr(88)}, v2, s[32:35], 0 offen')
    k(f'buffer_load_dwordx4 {vr(92)}, v2, s[32:35], 0 offen offset:128')
    A = 32
    nl = 2 * NSPLIT + 2 + 8 + 2
    for p in range(NSPLIT):
        k(f's_waitcnt vmcnt({nl - 2*(p+1)})')
        if p == 0:
            unpack(k, A, P, 8)
        else:
            unpack(k, 16, P + 8 * p, 8)
            for i in range(16):
                k(f'v_add_f32 v{A+i}, v{A+i}, v{16+i}')
    T = 80
    rnd(k, list(range(A, A + 16)), T)
    k('s_waitcnt vmcnt(8)')
    unpack(k, 16, 8, 8)
    unpack(k, 160, 168, 8)
    for i in range(16):
        k(f'v_mul_f32 v{A+i}, v{A+i}, v{160+i}')
    rnd(k, list(range(A, A + 16)), T)
    for i in range(16):
        k(f'v_add_f32 v{16+i}, v{16+i}, v{A+i}')
    for i in range(8):
        k(f'v_cvt_pk_bf16_f32 v{8+i}, v{16+2*i}, v{17+2*i}')
    unpack(k, 16, 8, 8)
    k(f'buffer_store_dwordx4 {vr(8)}, v3, s[44:47], s23 offen')
    k(f'buffer_store_dwordx4 {vr(12)}, v3, s[44:47], s23 offen offset:128')
    k('s_waitcnt vmcnt(2)')
    unpack(k, 64, 72, 8)
    unpack(k, 48, 56, 8)
    unpack(k, 176, 184, 8)
    layernorm_mod(k, 16, 32, 48, 64, T, 0, False)
    for i in range(8):
        k(f'v_cvt_pk_bf16_f32 v{96+i}, v{32+2*i}, v{33+2*i}')
    unpack(k, 32, 96, 8)
    k(f'buffer_store_dwordx4 {vr(96)}, v3, s[40:43], s23 offen')
    k(f'buffer_store_dwordx4 {vr(100)}, v3, s[40:43], s23 offen offset:128')
    unpack(k, 48, 88, 8)
    k(f'v_mul_f32 v{T+6}, v32, v48')
    for i in range(1, 16):
        k(f'v_fmac_f32 v{T+6}, v{32+i}, v{48+i}')
    for i in range(16):
        k(f'v_mul_f32 v{64+i}, v{32+i}, v{176+i}')
    rnd(k, list(range(64, 80)), T)
    for i in range(16):
        k(f'v_add_f32 v{64+i}, v{64+i}, v{16+i}')
    for i in range(8):
        k(f'v_cvt_pk_bf16_f32 v{104+i}, v{64+2*i}, v{65+2*i}')
    k(f'buffer_store_dwordx4 {vr(104)}, v3, s[36:39], s23 offen')
    k(f'buffer_store_dwordx4 {vr(108)}, v3, s[36:39], s23 offen offset:128')
    row_reduce(k, T + 6, T, 512)
    rnd1(k, T + 6)
    k('s_cmp_lg_u32 s22, 0')
    k('s_cbranch_scc1 fin_end')
    k('v_lshlrev_b32 v1, 2, v0')
    k('s_lshl_b32 s27, s2, 5')
    k('v_cmp_gt_u32 vcc, 8, v0')
    k('s_and_saveexec_b64 s[52:53], vcc')
    k(f'buffer_store_dword v{T+6}, v1, s[48:51], s27 offen')
    k.label('fin_end')
    return k, 256, 320, 1024, 192
```

```python
import sys
import asmgen
from asmgen import *
if 'prof' in sys.argv: asmgen.PROF = True
import k1
from k1 import build_k1
from k_small import *
from k_oproj import build_oproj
from k_moe import build_moe1, build_moe2b
for a in sys.argv[2:]:
    if '=' in a:
        kk, vv = a.split('=')
        k1.OPT[kk] = int(vv) if vv.isdigit() else vv
ks = [build_k1()]
if 'only1' in sys.argv: ks = ks[:1]
build_file(ks, sys.argv[1] if len(sys.argv) > 1 else 'k.s')
```

```python
from asmgen import *
import asmgen
import math
import struct

OPT = dict(rate=2, ntl='mw', pfw=2)
OOB = 0x40000000
NPRE = 4
BIAS = 60.0
QSCALE = math.log2(math.e) / math.sqrt(128.0)


def f32hex(x):
    return hex(struct.unpack('<I', struct.pack('<f', x))[0])


def vr(b, n=4):
    return f'v[{b}:{b+n-1}]'


SX, SW, SQ, SWS, SK2, SD, SXI, SC, SM = 24, 28, 32, 36, 40, 44, 48, 52, 56
sG, sRQ, sHEAD, sISV, sTQ, sPAIR, sCB, sT2, sL, sXB, sWB, sT, sKVS, sHROW, sADD = 4, 5, 6, 7, 8, 9, 10, 11, 12, 13, 14, 15, 16, 17, 18
sPASS, sH0, sH1, sWAVE, sBLK = 19, 20, 21, 22, 23
V_XD, V_WD, V_XR, V_WR = 4, 6, 8, 14
V_L16, V_L4, V_AT, V_PL = 20, 21, 22, 23
V_N = 24
V_POLL, V_ONE, V_PK = 29, 30, 31
sPASS0 = 60
PK = 48
XF = [64, 80]
ACC = 96
V_QR = 32
V_HV = 14
HR = 192
WQ = [128, 160]
QA = 64


def wreg(ks, nb):
    return (192 + ks * 8 if ks < 8 else 128 + (ks - 8) * 8) + nb * 4


def NTM():
    return ' nt' if 'm' in OPT.get('ntl', '') else ''


def stamp(k, name):
    names = OPT.get('ts', 'p1,s16,s32,s48,kv,att,x1').split(',')
    if name in names:
        tstamp(k, 1 + names.index(name))


def KVSC():
    return '' if OPT.get('plain') else ' sc1'


def srdr(b):
    return f's[{b}:{b+3}]'


class Tracker:
    def __init__(self, k):
        self.k = k
        self.issued = []

    def vm(self, tag, text):
        self.k(text)
        self.issued.append(tag)

    def wait(self, pred):
        last = -1
        for idx, t in enumerate(self.issued):
            if pred(t):
                last = idx
        assert last >= 0
        n = len(self.issued) - 1 - last
        assert n <= 63
        self.k(f's_waitcnt vmcnt({n})')


def items_list():
    it = []
    for S in range(8):
        it += [('x', S), ('w', S)]
    it += [('x', S) for S in range(8, 32)]
    it += [('q', S) for S in range(10)]
    return it


def bar_steps():
    return [s for s in range(1, 64, 2) if s < 16 or s % 4 == 3]


def ring_plan():
    it = items_list()
    slot, avail = {}, {}
    for i in range(9):
        slot[i] = i
        avail[i] = -1
    nxt = 9
    bars = bar_steps()
    for S in range(32):
        b = min(x for x in bars if x >= 2 * S + 1)
        free = [slot[it.index(('x', S))]]
        if S < 8:
            free.append(slot[it.index(('w', S))])
        if S == 15:
            free.append(9)
        for f in free:
            if nxt < len(it):
                slot[nxt] = f
                avail[nxt] = b
                nxt += 1
    assert nxt == len(it)
    perm = {slot[40 + q]: q for q in range(10)}
    assert len(perm) == 10
    slot = {i: perm[s] for i, s in slot.items()}
    return it, slot, avail, perm[9]


def wavesum(side, r, t):
    for sh in (1, 2, 4, 8):
        side.append(f'v_add_f32_dpp v{r}, v{r}, v{r} row_ror:{sh} row_mask:0xf bank_mask:0xf')
    for w in ('16', '32'):
        side.append(f'v_mov_b32 v{t}, v{r}')
        side.append(f'v_permlane{w}_swap_b32 v{r}, v{t}')
        side.append(f'v_add_f32 v{r}, v{r}, v{t}')


def rnd1(side, r):
    side.append(f'v_cvt_pk_bf16_f32 v{r}, v{r}, v{r}')
    side.append(f'v_lshlrev_b32 v{r}, 16, v{r}')


FLG = WS['modp'] + 0x10000


FLG2 = FLG + 0x4000


class Spins:
    def __init__(self, k):
        self.k = k
        self.l = []

    def test(self, kind, target, spass):
        if kind == 'cnt':
            out = [f'v_readfirstlane_b32 s3, v{V_POLL}']
            if spass:
                out.append(f's_or_b32 s3, s3, s{spass}')
            out.append(f's_cmp_ge_u32 s3, {target}')
        else:
            out = [f'v_cmp_le_u32 vcc, {target}, v{V_POLL}']
            out.append(f's_or_b32 s3, vcc_lo, s{spass}' if spass else 's_mov_b32 s3, vcc_lo')
            out += [f's_and_b32 s3, s3, {kind}', f's_cmp_eq_u32 s3, {kind}']
        return out

    def load(self, kind, soff, va):
        if kind == 'cnt':
            return f'buffer_load_dword v{V_POLL}, v{va}, {srdr(SD)}, 0 offen sc1'
        return f'buffer_load_dword v{V_POLL}, v{va}, {srdr(SWS)}, {soff} offen sc1'

    def check(self, kind, soff, target, va, spass):
        k = self.k
        sp, back = k.newlabel('spin'), k.newlabel('back')
        out = self.test(kind, target, spass) + [f's_cbranch_scc0 {sp}', back + ':']
        self.l.append((sp, back, kind, soff, target, va))
        return out

    def emit(self):
        k = self.k
        for sp, back, kind, soff, target, va in self.l:
            k.label(sp)
            k(f's_mov_b32 s{sT2}, 0')
            lp = k.newlabel('lp')
            k.label(lp)
            k(f's_sleep {OPT.get("slp", 4)}')
            k(self.load(kind, soff, va))
            k('s_waitcnt vmcnt(0)')
            k(f's_add_u32 s{sT2}, s{sT2}, 1')
            k(f's_cmp_ge_u32 s{sT2}, 0x4000')
            k(f's_cbranch_scc1 {back}')
            for x in self.test(kind, target, None):
                k(x)
            k(f's_cbranch_scc0 {lp}')
            k(f's_branch {back}')


def prologue(k, tr, it, slot, scr):
    k(f's_load_dwordx8 s[76:83], s[0:1], 0')
    k(f's_load_dwordx2 s[84:85], s[0:1], 32')
    k(f's_load_dwordx8 s[88:95], s[0:1], 88')
    k(f's_load_dwordx2 s[96:97], s[0:1], 120')
    k(f's_load_dwordx2 s[64:65], s[0:1], 40')
    k('v_lshrrev_b32 v1, 6, v0')
    k(f'v_readfirstlane_b32 s{sWAVE}, v1')
    k('v_lshrrev_b32 v1, 1, v0')
    k('v_and_b32 v2, 1, v0')
    k('v_lshlrev_b32 v184, 1, v1')
    k('v_mul_u32_u24 v185, 7680, v1')
    k('v_lshl_add_u32 v185, v2, 4, v185')
    k('v_lshrrev_b32 v1, 4, v0')
    k('v_lshl_add_u32 v1, v1, 1, v2')
    k('v_lshlrev_b32 v1, 5, v1')
    k(f'v_add_u32 v163, {scr*16384}, v1')
    k('v_and_b32 v0, 63, v0')
    k(f's_lshr_b32 s{sG}, s{sWAVE}, 2')
    k(f's_and_b32 s{sRQ}, s{sWAVE}, 3')
    k(f's_and_b32 s3, s2, 7')
    k(f's_lshr_b32 s{sT}, s2, 3')
    k(f's_lshl_b32 s{sCB}, s3, 5')
    k(f's_add_u32 s{sCB}, s{sCB}, s{sT}')
    k(f's_lshl_b32 s{sHEAD}, s3, 1')
    k(f's_and_b32 s3, s{sT}, 1')
    k(f's_add_u32 s{sHEAD}, s{sHEAD}, s3')
    k(f's_and_b32 s3, s{sT}, 2')
    k(f's_lshl_b32 s3, s3, 3')
    k(f's_add_u32 s{sHEAD}, s{sHEAD}, s3')
    k(f's_lshr_b32 s{sPAIR}, s{sT}, 2')
    k(f's_and_b32 s{sISV}, s{sPAIR}, 1')
    k(f's_lshr_b32 s{sTQ}, s{sT}, 3')
    k(f's_lshl_b32 s{sL}, s{sWAVE}, 11')
    k(f's_lshl_b32 s{sXB}, s{sTQ}, 17')
    k(f's_lshl_b32 s3, s{sWAVE}, 14')
    k(f's_add_u32 s{sXB}, s{sXB}, s3')
    k(f's_lshl_b32 s{sWB}, s{sWAVE}, 15')
    k(f's_lshl_b32 s3, s{sHEAD}, 8')
    k(f's_add_u32 s{sWB}, s{sWB}, s3')
    k('v_lshrrev_b32 v1, 3, v0')
    k('v_lshlrev_b32 v1, 10, v1')
    k('v_and_b32 v2, 7, v0')
    k('v_lshrrev_b32 v3, 4, v0')
    k('v_xor_b32 v2, v2, v3')
    k(f'v_lshl_or_b32 v{V_XD}, v2, 4, v1')
    k(f'v_xor_b32 v{V_XD+1}, 64, v{V_XD}')
    k(f'v_add_u32 v{V_XD+1}, {8192-1024}, v{V_XD+1}')
    k('v_and_b32 v2, 15, v0')
    k('v_lshlrev_b32 v1, 1, v3')
    k('v_xor_b32 v2, v2, v1')
    k(f's_lshl_b32 s3, s{sWAVE}, 2')
    k('s_and_b32 s3, s3, 8')
    k('v_xor_b32 v2, s3, v2')
    k('v_lshlrev_b32 v1, 13, v3')
    k(f'v_lshl_or_b32 v{V_WD}, v2, 4, v1')
    k(f'v_add_u32 v{V_WD+1}, {32*8192-1024}, v{V_WD}')
    k(f'v_lshlrev_b32 v{V_L16}, 4, v0')
    k(f'v_lshlrev_b32 v{V_L4}, 2, v0')
    k(f's_lshl_b32 s{sHROW}, s2, 3')
    k(f's_add_u32 s{sHROW}, s{sHROW}, s{sWAVE}')
    k(f's_mul_i32 s{sHROW}, s{sHROW}, 1280')
    k(f's_lshl_b32 s{sT2}, s{sCB}, 5')
    k('s_waitcnt lgkmcnt(0)')
    srd(k, SX, 78, SIZE['ckv'])
    k(f's_cmp_eq_u32 s{sISV}, 0')
    k(f's_cselect_b32 s{SW}, s82, s84')
    k(f's_cselect_b32 s{SW+1}, s83, s85')
    k(f's_mov_b32 s{SW+2}, {SIZE["wuk"]}')
    k(f's_mov_b32 s{SW+3}, 0x00020000')
    srd(k, SC, 88, SIZE['c'])
    srd(k, SM, 90, SIZE['wmod'])
    srd(k, SXI, 76, SIZE['x'])
    for p in range(3):
        tr.vm('c', f'buffer_load_ushort v{160+p}, v184, {srdr(SC)}, 0 offen offset:{p*512}')
    for p in range(3):
        k(f's_add_u32 s{sT}, s{sT2}, {p*256*7680}')
        tr.vm(('m', p), f'buffer_load_dwordx4 {vr(164+4*p)}, v185, {srdr(SM)}, s{sT} offen{NTM()}')
    tr.vm('xi', f'buffer_load_dwordx4 {vr(V_N)}, v{V_L16}, {srdr(SXI)}, s{sHROW} offen{NTM()}')
    tr.vm('xi', f'buffer_load_dword v{V_N+4}, v{V_L4}, {srdr(SXI)}, s{sHROW} offen offset:1024{NTM()}')
    for i in range(NPRE):
        for g in dma_item(k, tr, it, slot, i):
            g()
    srd(k, SQ, 80, SIZE['wq'])
    k('v_lshlrev_b32 v1, 7, v0')
    k(f'v_cmp_gt_u32 vcc, {OPT.get("npx", 32)}, v0')
    k(f'v_mov_b32 v2, {OOB}')
    k(f'v_cndmask_b32 v{PK+2}, v2, v1, vcc')
    k('v_lshrrev_b32 v1, 1, v0')
    k('v_lshlrev_b32 v1, 13, v1')
    k(f'v_and_b32 v{PK+3}, 1, v0')
    k(f'v_lshl_add_u32 v1, v{PK+3}, 7, v1')
    k('v_cmp_gt_u32 vcc, 20, v0')
    k(f'v_cndmask_b32 v{PK+3}, v2, v1, vcc')
    if OPT.get('pfw', 1):
        k('v_lshrrev_b32 v1, 2, v0')
        k('v_lshlrev_b32 v1, 19, v1')
        k(f'v_bfe_u32 v{PK+4}, v0, 1, 1')
        k(f'v_lshl_add_u32 v1, v{PK+4}, 13, v1')
        k(f'v_and_b32 v{PK+4}, 1, v0')
        k(f'v_lshl_add_u32 v1, v{PK+4}, 7, v1')
        k('v_cmp_gt_u32 vcc, 24, v0')
        k(f'v_cndmask_b32 v1, v2, v1, vcc')
        k(f's_lshl_b32 s3, s{sTQ}, 3')
        k(f's_add_u32 s3, s3, s{sWAVE}')
        k(f's_lshl_b32 s3, s3, 14')
        k(f's_lshl_b32 s{sT}, s{sHEAD}, 8')
        k(f's_add_u32 s3, s3, s{sT}')
        k(f's_add_u32 s3, s3, {2*64*8192}')
        tr.vm('pf', f'buffer_load_dword v{PK+4}, v1, {srdr(SW)}, s3 offen{" nt" if OPT.get("pfw", 1) == 2 else ""}')
    if OPT.get('pfa', 1):
        k('s_lshr_b32 s3, s2, 3')
        k('s_lshl_b32 s3, s3, 3')
        k(f's_add_u32 s3, s3, s{sWAVE}')
        k(f's_lshl_b32 s3, s3, 12')
        tr.vm('pf', f'buffer_load_dword v{PK+5}, v{PK+2}, {srdr(SX)}, s3 offen')
    srd(k, SWS, 96, SIZE['ws'])
    srd(k, SK2, 96, SIZE['ws'])
    srd(k, SD, 94, 256)
    k('v_and_b32 v1, 15, v0')
    k('v_lshrrev_b32 v2, 1, v1')
    k('v_xor_b32 v2, v2, v3')
    k(f's_lshl_b32 s3, s{sG}, 13')
    k('v_lshlrev_b32 v1, 7, v1')
    k('v_add_u32 v1, s3, v1')
    k(f'v_lshl_or_b32 v{V_XR}, v2, 4, v1')
    k(f'v_xor_b32 v{V_XR+1}, 64, v{V_XR}')
    for w in (1, 2):
        for a in range(2):
            k(f'v_add_u32 v{V_XR+2*w+a}, {w*65536}, v{V_XR+a}')
    k('v_bfe_u32 v1, v0, 2, 2')
    k('v_lshlrev_b32 v2, 8, v1')
    k('v_lshl_add_u32 v2, v3, 12, v2')
    k('v_and_b32 v47, 1, v3')
    k('v_lshl_add_u32 v1, v47, 2, v1')
    k('v_lshlrev_b32 v1, 1, v1')
    k('v_bfe_u32 v47, v0, 1, 1')
    k('v_xor_b32 v1, v1, v47')
    k('v_lshl_add_u32 v2, v1, 4, v2')
    k('v_and_b32 v1, 1, v0')
    k('v_lshl_add_u32 v47, v1, 3, v2')
    k(f's_lshl_b32 s3, s{sRQ}, 6')
    k(f'v_xor_b32 v{V_WR}, s3, v47')
    k(f'v_xor_b32 v{V_WR+1}, 32, v{V_WR}')
    for w in (1, 2):
        for a in range(2):
            k(f'v_add_u32 v{V_WR+2*w+a}, {w*65536}, v{V_WR+a}')
    k(f's_mov_b32 s{sT}, {OOB}')
    k(f's_cmp_eq_u32 s{sWAVE}, 0')
    k(f's_cselect_b32 s3, 0, s{sT}')
    k(f's_cselect_b32 s{sPASS0}, 0, 0xffff')
    k(f'v_mov_b32 v1, s{sT}')
    k('v_cmp_eq_u32 vcc, 0, v0')
    k(f'v_mov_b32 v2, s3')
    k(f'v_cndmask_b32 v{V_AT}, v1, v2, vcc')
    k(f'v_add_u32 v2, s3, v{V_L4}')
    k('v_cmp_gt_u32 vcc, 16, v0')
    k(f'v_cndmask_b32 v{V_PK}, v1, v2, vcc')
    k(f's_cmp_eq_u32 s{sRQ}, 0')
    k(f's_cselect_b32 s3, 0, s{sT}')
    k(f's_cselect_b32 s{sPASS}, 0, 0xffff')
    k(f'v_add_u32 v2, s3, v{V_L4}')
    k(f'v_cndmask_b32 v{V_PL}, v1, v2, vcc')
    k(f'v_mov_b32 v{V_ONE}, 1')
    k(f'v_mov_b32 v35, 0')
    k(f's_lshl_b32 s3, s{sCB}, 8')
    k(f's_add_u32 s3, s3, {FLG}')
    k(f's_cmp_lt_u32 s{sCB}, 48')
    k(f's_cselect_b32 s3, s3, s{sT}')
    tr.vm('ms', f'buffer_store_dword v35, v{V_PK}, {srdr(SWS)}, s3 offen sc1')
    k(f's_lshl_b32 s3, s{sCB}, 8')
    k(f's_add_u32 s3, s3, {FLG2}')
    k(f's_lshl_b32 s61, s{sWAVE}, 5')
    k(f's_add_u32 s61, s61, s{sCB}')
    k(f's_cmp_lt_u32 s61, 32')
    k(f's_cselect_b32 s3, s3, s{sT}')
    tr.vm('ms', f'buffer_store_dword v35, v{V_L4}, {srdr(SWS)}, s3 offen sc1')
    k(f's_cmp_eq_u32 s{sWAVE}, 0')
    k(f's_cselect_b32 s3, 0, s{sT}')
    k(f's_cmp_lt_u32 s{sCB}, 240')
    k(f's_cselect_b32 s3, s3, s{sT}')
    k('v_lshlrev_b32 v2, 1, v0')
    k('v_add_u32 v2, s3, v2')
    k('v_and_b32 v33, 0x31, v0')
    k('v_cmp_eq_u32 vcc, 0, v33')
    k('v_cndmask_b32 v33, v1, v2, vcc')
    k('v_and_b32 v1, 15, v0')
    k('v_lshlrev_b32 v1, 2, v1')
    k('v_lshl_add_u32 v1, v3, 9, v1')
    k(f'v_add_u32 v32, {scr*16384}, v1')
    k(f's_sub_u32 s3, s{sCB}, 40')
    k(f's_cmp_lt_u32 s3, 40')
    k(f's_cselect_b32 s{sADD}, 1.0, 0')
    k(f's_sub_u32 s3, s{sCB}, 160')
    k(f's_cmp_lt_u32 s3, 40')
    k(f's_cselect_b32 s{sADD}, 1.0, s{sADD}')
    k(f's_lshl_b32 s{sKVS}, s{sHEAD}, 20')
    k(f's_lshl_b32 s3, s{sTQ}, 16')
    k(f's_add_u32 s{sKVS}, s{sKVS}, s3')
    k(f's_lshl_b32 s3, s{sG}, 15')
    k(f's_add_u32 s{sKVS}, s{sKVS}, s3')
    k(f's_lshl_b32 s3, s{sRQ}, 10')
    k(f's_lshl_b32 s3, s3, s{sISV}')
    k(f's_add_u32 s{sKVS}, s{sKVS}, s3')
    k(f's_lshl_b32 s3, s{sISV}, 14')
    k(f's_add_u32 s{sKVS}, s{sKVS}, s3')
    k(f's_sub_u32 s3, 15, s{sPAIR}')
    k(f's_cmp_eq_u32 s{sG}, 0')
    k(f's_cselect_b32 s{sBLK}, s3, s{sPAIR}')
    k(f's_lshl_b32 s3, s{sBLK}, 2')
    k(f's_add_u32 s3, s3, s{sRQ}')
    k(f's_mul_i32 s3, s3, {2*20480}')
    k(f's_add_u32 s{sH0}, s3, {WS["h"]}')
    k(f's_lshr_b32 s3, s2, 1')
    k(f's_mul_i32 s{sH1}, s3, 20480')
    k(f's_and_b32 s3, s2, 1')
    k(f's_lshl_b32 s3, s3, 7')
    k(f's_add_u32 s{sH1}, s{sH1}, s3')
    k(f's_add_u32 s{sH1}, s{sH1}, {WS["h"]}')
    for x in pre_stream(k, tr):
        x() if callable(x) else k(x)
    k('s_waitcnt lgkmcnt(0)')


def dma_item(k, tr, it, slot, i):
    typ, S = it[i]
    if typ == 'x':
        base, off, s, v = sXB, (S // 8) * 4 * 131072 + (S % 8) * 128, SX, V_XD
    else:
        base, off, s, v = sWB, S * 64 * 8192, (SW if typ == 'w' else SQ), V_WD

    nt = ' nt' if typ in OPT.get('ntl', '') else ''
    if OPT.get('hotx') and typ == 'x':
        off = 0
    if OPT.get('nold') and i >= 9:
        off = OOB

    if OPT.get('skipdma') and i >= NPRE and (OPT['skipdma'] == 1 or typ == 'w'):
        return [lambda: None, lambda: None]

    def p0():
        k(f's_add_u32 m0, s{sL}, {slot[i]*16384}')
        k(f's_add_u32 s{sT}, s{base}, {off}')
        tr.vm(('it', i), f'buffer_load_dwordx4 v{v}, {srdr(s)}, s{sT} offen{nt} lds')

    def p1():
        tr.vm(('it', i), f'buffer_load_dwordx4 v{v+1}, {srdr(s)}, s{sT} offen offset:1024{nt} lds')
    return [p0, p1]


def pre_stream(k, tr):
    s = []
    s.append(lambda: tr.wait(lambda t: t == 'c'))
    s.append(f's_mov_b32 s3, {f32hex(-1.4426950408889634)}')
    for p in range(3):
        c, t = 160 + p, 184 + p
        s += [f'v_lshlrev_b32 v{c}, 16, v{c}', f'v_mul_f32 v{t}, s3, v{c}', f'v_exp_f32 v{t}, v{t}']
    for p in range(3):
        c, t = 160 + p, 184 + p
        s += [f'v_add_f32 v{t}, 1.0, v{t}', f'v_rcp_f32 v{t}, v{t}']
    for p in range(3):
        c, t = 160 + p, 184 + p
        s += [f'v_mul_f32 v{c}, v{c}, v{t}']
        rnd1(s, c)
    for p in range(3):
        s.append(lambda p=p: tr.wait(lambda t: t == ('m', p)))
        for i in range(4):
            w = 164 + 4 * p + i
            s += [f'v_lshlrev_b32 v{184+2*i}, 16, v{w}', f'v_and_b32 v{185+2*i}, 0xffff0000, v{w}']
        for e in range(8):
            s.append(f'v_mul_f32 v{176+e}, v{160+p}, v{184+e}' if p == 0 else f'v_fmac_f32 v{176+e}, v{160+p}, v{184+e}')
    for sh in (2, 4, 8):
        for e in range(8):
            s.append(f'v_add_f32_dpp v{176+e}, v{176+e}, v{176+e} row_ror:{sh} row_mask:0xf bank_mask:0xf')
    s += [f'ds_write_b128 v163, {vr(176)}', f'ds_write_b128 v163, {vr(180)} offset:16']
    s += ['s_waitcnt lgkmcnt(0)', 's_barrier']
    for i in range(4):
        s.append(f'ds_read2_b32 v[{36+2*i}:{37+2*i}], v32 offset0:{32*i} offset1:{32*i+16}')
    s.append(f's_lshl_b32 s3, s{sCB}, 5')
    s.append(f's_add_u32 s3, s3, {WS["modp"]}')
    s.append('s_waitcnt lgkmcnt(0)')
    for a, b in ((36, 37), (38, 39), (40, 41), (42, 43), (36, 38), (40, 42), (36, 40)):
        s.append(f'v_add_f32 v{a}, v{a}, v{b}')
    for w in ('16', '32'):
        s += ['v_mov_b32 v37, v36', f'v_permlane{w}_swap_b32 v36, v37', 'v_add_f32 v36, v36, v37']
    rnd1(s, 36)
    s.append(f'v_add_f32 v36, s{sADD}, v36')
    s.append('v_mov_b32_dpp v37, v36 quad_perm:[1,0,3,2] row_mask:0xf bank_mask:0xf')
    s.append('v_cvt_pk_bf16_f32 v34, v36, v37')
    s.append(lambda: tr.vm('ms', f'buffer_store_dword v34, v33, {srdr(SWS)}, s3 offen sc1'))
    X = 36
    A, B = 46, 1
    s.append(lambda: tr.wait(lambda t: t == 'xi'))
    for i in range(5):
        s += [f'v_lshlrev_b32 v{X+2*i}, 16, v{V_N+i}', f'v_and_b32 v{X+1+2*i}, 0xffff0000, v{V_N+i}']
    s += [f'v_add_f32 v{A}, v{X}, v{X+1}', f'v_add_f32 v{B}, v{X+2}, v{X+3}']
    for i in range(4, 10, 2):
        s += [f'v_add_f32 v{A}, v{A}, v{X+i}', f'v_add_f32 v{B}, v{B}, v{X+1+i}']
    s.append(f'v_add_f32 v{A}, v{A}, v{B}')
    wavesum(s, A, 2)
    s.append(f'v_mul_f32 v{A}, {f32hex(1.0/640)}, v{A}')
    for i in range(10):
        t = 2 + (i & 1)
        s.append(f'v_sub_f32 v{t}, v{X+i}, v{A}')
        s.append(f'v_mul_f32 v{B}, v{t}, v{t}' if i == 0 else f'v_fmac_f32 v{B}, v{t}, v{t}')
    wavesum(s, B, 2)
    s.append(f'v_mul_f32 v{B}, {f32hex(1.0/640)}, v{B}')
    rnd1(s, B)
    rnd1(s, A)
    s.append(f'v_add_f32 v{B}, {f32hex(1e-5)}, v{B}')
    rnd1(s, B)
    s.append(f'v_sqrt_f32 v{B}, v{B}')
    rnd1(s, B)
    s.append(f'v_rcp_f32 v{B}, v{B}')
    for i in range(5):
        a, b = X + 2 * i, X + 1 + 2 * i
        t = 2 + (i & 1)
        s += [f'v_sub_f32 v{a}, v{a}, v{A}', f'v_sub_f32 v{b}, v{b}, v{A}', f'v_cvt_pk_bf16_f32 v{t}, v{a}, v{b}',
              f'v_lshlrev_b32 v{a}, 16, v{t}', f'v_and_b32 v{b}, 0xffff0000, v{t}',
              f'v_mul_f32 v{a}, v{a}, v{B}', f'v_mul_f32 v{b}, v{b}, v{B}', f'v_cvt_pk_bf16_f32 v{V_N+i}, v{a}, v{b}']
    return s


def side_stream(k, tr, spins, isk, scr):
    s = []
    MODB = WS['modp']
    SCR = scr * 16384
    s.append(('mark', 'ms'))
    s += ['v_and_b32 v1, 7, v0', f'v_xor_b32 v1, s{sWAVE}, v1', 'v_lshlrev_b32 v1, 4, v1', 'v_lshl_add_u32 v1, v0, 7, v1',
          f'v_add_u32 v1, {SCR}, v1',
          'v_bfe_u32 v2, v0, 2, 3', f'v_xor_b32 v2, s{sWAVE}, v2', 'v_lshlrev_b32 v2, 4, v2', 'v_lshrrev_b32 v3, 2, v0',
          'v_lshl_add_u32 v2, v3, 7, v2', 'v_and_b32 v3, 3, v0', 'v_lshl_add_u32 v2, v3, 2, v2', f'v_add_u32 v2, {SCR + 8192}, v2']
    NPX = OPT.get('npx', 32)
    pfx = [('blk', ['s_lshr_b32 s3, s2, 3', 's_lshl_b32 s3, s3, 3', f's_add_u32 s3, s3, s{sWAVE}', f's_mul_i32 s3, s3, {NPX*128}',
                    f's_add_u32 s3, s3, {2048*1024 - NPX*128*256}']),
           lambda: tr.vm('pf', f'buffer_load_dword v{PK}, v{PK+2}, {srdr(SX)}, s3 offen')]
    pfq = [('blk', [f's_mul_i32 s3, s{sPAIR}, 80', f's_mul_i32 s61, s{sWAVE}, 10', 's_add_u32 s3, s3, s61', 's_lshl_b32 s3, s3, 13',
                    f's_lshl_b32 s61, s{sHEAD}, 8', 's_add_u32 s3, s3, s61']),
           lambda: tr.vm('pf', f'buffer_load_dword v{PK+1}, v{PK+3}, {srdr(SQ)}, s3 offen')]
    PFX, PFQ = OPT.get('pfx', 7), OPT.get('pfq', 8)
    if PFX < 7:
        s += [('at', PFX)] + pfx
    if PFQ < 7:
        s += [('at', PFQ)] + pfq
    s.append(('after', 'ms', OPT.get('msw', 1)))
    s.append(lambda: tr.wait(lambda t: t == 'ms'))
    s.append(('blk', [f's_cmp_lt_u32 s{sCB}, 80', f's_cselect_b32 s3, 0, 0x1000']))
    s.append(lambda: tr.vm('at', f'buffer_atomic_add v{V_ONE}, v{V_AT}, {srdr(SD)}, s3 offen sc1'))
    s.append(('mark', 'modflag'))
    P1 = OPT.get('p1', 6)
    B1 = OPT.get('b1', 11)
    assert B1 in bar_steps()
    if 7 <= PFX < P1:
        s += [('at', PFX)] + pfx
    if 7 <= PFQ < P1:
        s += [('at', PFQ)] + pfq
    s.append(('at', P1))
    s.append(lambda: tr.vm('pl', spins.load('cnt', None, V_AT)))
    if PFX >= P1:
        s += [('at', PFX)] + pfx
    if PFQ >= P1:
        s += [('at', PFQ)] + pfq
    s.append(('at', B1 - 1))
    s.append(('late',))
    s.append(lambda: tr.wait(lambda t: t == 'pl'))
    s.append(('blk', spins.check('cnt', None, 80, V_AT, sPASS0)))
    s.append(('dl', B1 - 1))
    s.append(('ab', B1))
    s.append(f's_mov_b32 s3, {MODB}')
    s.append(lambda: tr.vm('sa', f'buffer_load_dwordx4 {vr(32)}, v{V_L16}, {srdr(SWS)}, s3 offen sc1'))
    s.append(lambda: tr.vm('sa', f'buffer_load_dwordx4 {vr(40)}, v{V_L16}, {srdr(SWS)}, s3 offen offset:1280 sc1'))
    s.append(lambda: tr.vm('sa', f'buffer_load_dword v36, v{V_L4}, {srdr(SWS)}, s3 offen offset:1024 sc1'))
    s.append(lambda: tr.vm('sa', f'buffer_load_dword v37, v{V_L4}, {srdr(SWS)}, s3 offen offset:2304 sc1'))
    s.append(('at', B1 + 4))
    s.append(lambda: tr.wait(lambda t: t == 'sa'))
    for i in range(5):
        n = V_N + i
        sa = 32 + i if i < 4 else 36
        ca = 40 + i if i < 4 else 37
        s += [f'v_lshlrev_b32 v38, 16, v{n}', f'v_and_b32 v39, 0xffff0000, v{n}',
              f'v_lshlrev_b32 v44, 16, v{ca}', f'v_and_b32 v45, 0xffff0000, v{ca}',
              'v_mul_f32 v38, v38, v44', 'v_mul_f32 v39, v39, v45', 'v_cvt_pk_bf16_f32 v46, v38, v39',
              'v_lshlrev_b32 v38, 16, v46', 'v_and_b32 v39, 0xffff0000, v46',
              f'v_lshlrev_b32 v44, 16, v{sa}', f'v_and_b32 v45, 0xffff0000, v{sa}',
              'v_add_f32 v38, v38, v44', 'v_add_f32 v39, v39, v45', f'v_cvt_pk_bf16_f32 v{n}, v38, v39']
        if i == 3:
            s.append(f'ds_write_b128 v1, {vr(V_N)}')
    s.append(f'ds_write_b32 v2, v{V_N+4}')
    s.append(('mark', 'hw'))
    B2 = OPT.get('b2', 23)
    assert B2 in bar_steps() and B2 + 4 <= 31
    s.append(('dl', B2 - 1))
    s += [('blk', [f's_lshl_b32 s3, s{sWAVE}, 10', f's_add_u32 s3, s3, {SCR}', f'v_add_u32 v1, s3, v{V_L16}']),
          ('blk', [f's_lshl_b32 s3, s{sWAVE}, 8', f's_add_u32 s3, s3, {SCR + 8192}', f'v_add_u32 v2, s3, v{V_L16}']),
          'v_lshrrev_b32 v39, 3, v0', 'v_and_b32 v44, 7, v0', 'v_xor_b32 v3, v44, v39', 'v_lshlrev_b32 v3, 4, v3',
          'v_lshl_add_u32 v3, v39, 8, v3',
          ('blk', [f's_lshl_b32 s3, s{sWAVE}, 11', 'v_add_u32 v3, s3, v3']),
          ('blk', [f's_lshl_b32 s3, s{sWAVE}, 1', 'v_add_u32 v39, s3, v39']),
          'v_and_b32 v45, 7, v39', 'v_xor_b32 v38, v44, v45', 'v_lshlrev_b32 v38, 4, v38', 'v_lshl_add_u32 v38, v39, 8, v38',
          'v_add_u32 v38, 0x4000, v38', 'v_lshrrev_b32 v45, 4, v0', 'v_lshl_or_b32 v38, v45, 28, v38']
    s.append(('ab', B2))
    s += [f'ds_read_b128 {vr(32)}, v1', f'ds_read_b128 {vr(40)}, v2']
    s.append(('dl', B2))
    s.append(('at', B2 + 1))
    s.append(lambda: tr.vm('hs', f'buffer_store_dwordx4 {vr(32)}, v3, {srdr(SWS)}, s{sH1} offen sc1'))
    s.append(lambda: tr.vm('hs', f'buffer_store_dwordx4 {vr(40)}, v38, {srdr(SWS)}, s{sH1} offen sc1'))
    s.append(('mark', 'hs'))
    B3 = OPT.get('b3', 31)
    assert B3 in bar_steps()
    s.append(('at', B3 - 1))
    s.append(('late',))
    s.append(lambda: tr.wait(lambda t: t == 'hs'))
    s.append(('dl', B3 - 1))
    s.append(('ab', B3))
    s.append('s_lshr_b32 s3, s2, 4')
    s.append('s_lshl_b32 s3, s3, 8')
    s.append(f's_and_b32 s{sADD}, s2, 15')
    s.append(f's_lshl_b32 s{sADD}, s{sADD}, 2')
    s.append(f's_add_u32 s3, s3, s{sADD}')
    s.append(f's_add_u32 s3, s3, {FLG}')
    s.append(lambda: tr.vm('at', f'buffer_store_dword v{V_ONE}, v{V_AT}, {srdr(SWS)}, s3 offen sc1'))
    for db in range(8):
        s.append(f'v_xor_b32 v{V_QR+db}, {db*32}, v47')
    P2 = OPT.get('p2', 40)
    s.append(('at', P2))
    s.append(f's_lshl_b32 s{sADD}, s{sBLK}, 8')
    s.append(f's_add_u32 s{sADD}, s{sADD}, {FLG}')
    s.append(lambda: tr.vm('pl', spins.load(0xffff, f's{sADD}', V_PL)))
    s.append(('at', 46))
    s.append(('late',))
    s.append(lambda: tr.wait(lambda t: t == 'pl'))
    s.append(('blk', spins.check(0xffff, f's{sADD}', 1, V_PL, sPASS)))
    s.append(('dl', 46))
    s.append(('ab', 47))
    s.append(f's_lshl_b32 s{sADD}, s{sHEAD}, 8')
    s.append(f's_add_u32 s{sADD}, s{sADD}, {FLG + 4096}')
    s.append(f's_lshl_b32 s{sHROW}, s{sPAIR}, 2')
    s.append(f's_add_u32 s{sHROW}, s{sHROW}, s{sADD}')
    s.append(f'v_mov_b32 v{V_N}, 2')
    for q in range(8):
        s.append(('at', 49 + q))
        s += hload(k, tr, q)
        if q == 1:
            s.append(('late',))
            s.append(lambda: tr.wait(lambda t: t == ('st', 1)))
            s.append(('dl', 50))
            s.append(('ab', 51))
            s.append(lambda: tr.vm('at', f'buffer_store_dword v{V_ONE}, v{V_AT}, {srdr(SWS)}, s{sHROW} offen sc1'))
    s.append(('dl', 63))
    return s


def inv_blk(k, tr):
    sk, jn = k.newlabel('noinv'), k.newlabel('invj')
    return [('blk', [f's_cmp_lg_u32 s{sWAVE}, 0', f's_cbranch_scc1 {sk}', 'buffer_inv sc1', f's_branch {jn}', sk + ':',
                     f'buffer_load_dword v{V_POLL}, v{V_AT}, {srdr(SD)}, 0 offen', jn + ':']),
            lambda: tr.issued.append('inv')]


def hload(k, tr, q):
    out = []
    for qb in range(2):
        r = HR + (q % 8) * 8 + qb * 4

        def f(r=r, qb=qb):
            k(f's_add_u32 s61, s{sH0}, {OOB if OPT.get("noh") else qb*20480 + q*1024}')
            tr.vm(('h', q), f'buffer_load_dwordx4 {vr(r)}, v{V_L16}, {srdr(SWS)}, s61 offen{"" if OPT.get("plainh") else " sc1"}')
        out.append(f)
    return out


class Side:
    def __init__(self, k, lst):
        self.k = k
        self.l = lst
        self.step = -1
        self.bar = -1
        self.slot = 0
        self.marks = {}

    def pump(self, n):
        l = self.l
        while l and n > 0:
            x = l[0]
            if isinstance(x, tuple):
                if x[0] == 'at':
                    if self.step < x[1]:
                        return
                elif x[0] == 'ab':
                    if self.bar < x[1]:
                        return
                elif x[0] == 'late':
                    if self.slot < 5:
                        return
                elif x[0] == 'mark':
                    self.marks[x[1]] = self.step
                elif x[0] == 'after':
                    if self.step < self.marks[x[1]] + x[2]:
                        return
                elif x[0] == 'dl':
                    assert self.step <= x[1], ('deadline', x, self.step)
                elif x[0] == 'blk':
                    for t in x[1]:
                        self.k(t)
                    n -= 2
                l.pop(0)
                continue
            l.pop(0)
            if callable(x):
                x()
            else:
                self.k(x)
            n -= 1

    def check_deadline(self):
        for x in self.l:
            if isinstance(x, tuple) and x[0] == 'dl':
                assert self.step < x[1] + 1, ('deadline miss', x, self.step)
                return


def kv_pack(isk, f):
    if isk:
        a0, a1 = ACC + f * 8, ACC + f * 8 + 4
    else:
        u, nb = f >> 1, f & 1
        a0, a1 = ACC + (4 * u + nb) * 4, ACC + (4 * u + 2 + nb) * 4
    t = PK + 4 * f
    return [f'v_cvt_pk_bf16_f32 v{t}, v{a0}, v{a0+1}', f'v_cvt_pk_bf16_f32 v{t+1}, v{a0+2}, v{a0+3}',
            f'v_cvt_pk_bf16_f32 v{t+2}, v{a1}, v{a1+1}', f'v_cvt_pk_bf16_f32 v{t+3}, v{a1+2}, v{a1+3}']


def kv_store(k, tr, isk, st, f):
    off = st * 4 * 65536 + (f * 4096 if isk else (f >> 1) * 8192 + (f & 1) * 1024)
    if OPT.get('nost'):
        off = OOB
    k(f's_add_u32 s{sT2}, s{sKVS}, {off}')
    tr.vm(('st', st), f'buffer_store_dwordx4 {vr(PK+4*f)}, v{V_L16}, {srdr(SWS)}, s{sT2} offen {OPT.get("stm", "sc1").replace("+", " ")}')


def qreads(q):
    S = q // 2
    out = []
    for db in range(8):
        for t in range(2):
            r = WQ[q & 1] + 4 * db + 2 * t
            out.append(f'ds_read_b64_tr_b16 v[{r}:{r+1}], v{V_QR+db} offset:{(S % 4)*16384 + t*2048 + (q & 1)*1024}')
    return out


def kv_main(k, tr, spins, it, slot, avail, isk, scr):
    side = Side(k, side_stream(k, tr, spins, isk, scr))

    def reads(s):
        S = s // 2
        sl = slot[it.index(('x', S))]
        out = []
        if s < 16:
            sw = slot[it.index(('w', S))]
            for nb in range(2):
                for t in range(2):
                    r = wreg(s, nb) + 2 * t
                    out.append(f'ds_read_b64_tr_b16 v[{r}:{r+1}], v{V_WR+2*(sw//4)+nb} offset:{(sw % 4)*16384 + t*2048 + (s & 1)*1024}')
        xo = [f'ds_read_b128 {vr(XF[s & 1]+4*rb)}, v{V_XR+2*(sl//4)+(s & 1)} offset:{(sl % 4)*16384 + rb*2048}' for rb in range(4)]
        return xo[:1] + out + xo[1:]

    bars = bar_steps()

    def stage_items(S):
        if S < 32:
            return [it.index(('x', S))] + ([it.index(('w', S))] if S < 8 else [])
        return [40 + q for q in range(5)]

    def wait_stage(Ss):
        idx = sum((stage_items(S) for S in Ss), [])
        if OPT.get('skipdma'):
            idx = [i for i in idx if ('it', i) in tr.issued]
            if not idx:
                return
        for i in idx:
            assert tr.issued.count(('it', i)) == 2, ('item not issued', i, Ss)
        tr.wait(lambda t: t[0] == 'it' and t[1] in idx)

    pend = []
    for i in range(NPRE, len(it)):
        pend += [(avail[i], p) for p in dma_item(k, tr, it, slot, i)]
    wait_stage([0])
    k('s_barrier')
    stamp(k, 'p1')
    for r in reads(0):
        k(r)
    side.step = 0
    for s in range(64):
        st, ks, S = s // 16, s % 16, s // 2
        side.step = s
        side.check_deadline()
        stamp(k, f's{s}')
        ms = []
        for rb in range(4):
            for nb in range(2):
                acc = ACC + (rb * 2 + nb) * 4
                x, w = vr(XF[s & 1] + 4 * rb), vr(wreg(ks, nb))
                a, b = (w, x) if isk else (x, w)
                ms.append(f'v_mfma_f32_16x16x32_bf16 {vr(acc)}, {a}, {b}, {"0" if ks == 0 else vr(acc)}')
        rs = reads(s + 1) if s + 1 < 64 else qreads(0)
        k('s_waitcnt lgkmcnt(0)')
        if s in bars:
            nb_ = min([x for x in bars if x > s] + [65])
            wait_stage(range(S + 1, (nb_ - 1) // 2 + 1))
            k('s_barrier')
            side.bar = s
        nd = 0
        cap = 4 if s < 16 else (4 if s == 63 else 2)
        for i in range(8):
            side.slot = i
            if ks == 0 and st > 0:
                fl = ([i // 2] if i % 2 == 0 else []) if isk else ([i // 2, i // 2 + 1] if i % 4 == 0 else [])
                for f in fl:
                    for x in kv_pack(isk, f):
                        k(x)
            for _ in range(2 if len(rs) <= 2 * (8 - i) else 3):
                if rs:
                    k(rs.pop(0))
            k(ms[i])
            if pend and pend[0][0] <= side.bar and nd < cap and i % 2 == 1:
                pend.pop(0)[1]()
                nd += 1
            elif st > 0 and ks % 4 == 1 and i == 6:
                kv_store(k, tr, isk, st - 1, ks // 4)
            elif not (ks == 0 and st > 0):
                side.pump(OPT['rate'])
        assert not rs, (s, rs)
    assert not pend
    side.step = 64
    side.pump(1000)
    assert not side.l, side.l
    print('marks', side.marks)


O0, S0, Q0, P0, R0, NM, T0, ONES, LA = 192, 160, 128, 112, 80, 72, 56, 40, 44
V_KADDR, V_VADDR, V_MDB, V_MD, V_NEG, V_TS, V_L, V_ST = 15, 16, 17, 18, 19, 24, 25, 27
STASH = 131072
sBIAS, sCLAMP, sJ, sFIRST, sGB, sLB = 48, 49, 50, 51, 52, 53
sTN = 59
sJJ, sGJ, sMLO, sFIN, sSWI = 7, 8, 10, 13, 14
sCTX = 17


SO = 28
sFLG, sPOL, sCX0, sCX1, sPB, sWG, sWL, sWG2, sWL2, sWL3 = 24, 25, 26, 27, 32, 33, 34, 35, 44, 45
V_WO, V_TR, V_F1, V_F4, V_EX, V_SA = 4, 9, 11, 12, 13, 14
OACC, CX = 176, 96
sPF, V_PF = 46, 54
WFR = [[32 + 4 * n for n in range(10)], [72 + 4 * n for n in range(6)] + [160 + 4 * n for n in range(4)]]
SLOTB = [122880, 81920, 0, 40960]
HOFF = [0, 1, 16, 17]
PSTRIDE = 128 * 20480


def wo_voff(d, sp, c, t=(1, 2)):
    a, b = t
    return [f'v_add_u32 v{a}, s{sp}, v0'] + ([f'v_add_u32 v{a}, {c*64}, v{a}'] if c else []) + [
        f'v_mul_u32_u24 v{b}, 52429, v{a}', f'v_lshrrev_b32 v{b}, 20, v{b}', f'v_mul_u32_u24 v{d}, 20, v{b}',
        f'v_sub_u32 v{a}, v{a}, v{d}', f'v_bfe_u32 v{d}, v{b}, 2, 1', f'v_xor_b32 v{a}, v{a}, v{d}',
        f'v_mul_u32_u24 v{b}, 1280, v{b}', f'v_lshl_add_u32 v{d}, v{a}, 4, v{b}']


def o_setup():
    s = []
    s += [f's_mov_b32 s{SO}, s64', f's_mov_b32 s{SO+1}, s65', f's_mov_b32 s{SO+2}, {SIZE["wo"]}', f's_mov_b32 s{SO+3}, 0x00020000']
    s += [('blk', [f's_lshl_b32 s3, s{sBLK}, 2', f's_add_u32 s3, s3, s{sRQ}', 's_lshl_b32 s3, s3, 7',
                   f's_and_b32 s{sFLG}, s{sHEAD}, 14', f's_lshl_b32 s{sFLG}, s{sFLG}, 3', f's_add_u32 s{sFLG}, s{sFLG}, s3']),
          ('blk', [f's_and_b32 s3, s{sHEAD}, 1', 's_lshl_b32 s3, s3, 2', f's_add_u32 s{sFLG}, s{sFLG}, s3',
                   f's_lshr_b32 s3, s{sHEAD}, 4', 's_lshl_b32 s3, s3, 3', f's_add_u32 s{sFLG}, s{sFLG}, s3',
                   f's_add_u32 s{sFLG}, s{sFLG}, {FLG2}'])]
    s += [('blk', ['s_lshr_b32 s3, s2, 5', f's_xor_b32 s{sPOL}, s{sG}, 1', f's_lshl_b32 s{sPOL}, s{sPOL}, 3',
                   f's_add_u32 s3, s3, s{sPOL}', 's_lshl_b32 s3, s3, 2', f's_add_u32 s3, s3, s{sRQ}',
                   f's_lshl_b32 s{sCX0}, s3, 18', f's_mul_i32 s{sPB}, s3, {2*20480}', f's_lshl_b32 s{sPOL}, s3, 7']),
          ('blk', ['s_and_b32 s3, s2, 7', 's_lshl_b32 s61, s3, 4', f's_add_u32 s{sPOL}, s{sPOL}, s61',
                   f's_add_u32 s{sPOL}, s{sPOL}, {FLG2}',
                   's_lshl_b32 s61, s3, 13', f's_add_u32 s{sCX0}, s{sCX0}, s61', f's_add_u32 s{sCX0}, s{sCX0}, {WS["ctx"]}',
                   f's_add_u32 s{sCX1}, s{sCX0}, 0x20000']),
          ('blk', [f's_mul_i32 s61, s3, {PSTRIDE}', f's_add_u32 s{sPB}, s{sPB}, s61', f's_add_u32 s{sPB}, s{sPB}, {WS["part"]}',
                   f's_mul_i32 s{sWG2}, s3, {2*128*1280}', 's_bfe_u32 s3, s2, 0x20003', 's_mul_i32 s61, s3, 5120',
                   f's_add_u32 s{sPB}, s{sPB}, s61', 's_mul_i32 s61, s3, 320', f's_add_u32 s{sWG2}, s{sWG2}, s61']),
          ('blk', [f's_xor_b32 s3, s{sG}, 1', f's_mul_i32 s3, s3, {128*1280}', f's_add_u32 s{sWG}, s{sWG2}, s3',
                   f's_add_u32 s{sWG2}, s{sWG2}, {16*128*1280}',
                   f's_mul_i32 s{sWL}, s{sG}, 40960', f's_mul_i32 s3, s{sRQ}, 10240', f's_add_u32 s{sWL}, s{sWL}, s3',
                   f's_add_u32 s{sWL}, s{sWL}, 81920', f's_mul_i32 s{sWL3}, s{sRQ}, 640'])]
    for c in range(5):
        s += wo_voff(V_WO + c, sWL3, c)
    s += [('blk', [f's_lshl_b32 s3, s{sRQ}, 14', f's_add_u32 s{sWL2}, s3, 0x4000', f's_cmp_eq_u32 s{sRQ}, 0',
                   f's_cselect_b32 s{sWL2}, 0, s{sWL2}', f's_lshl_b32 s{sWL3}, s{sRQ}, 12', f's_add_u32 s{sWL3}, s{sWL3}, 0x4000']),
          f'v_add_u32 v{V_EX}, s{sWL2}, v{V_L16}', f'v_add_u32 v{V_SA}, s{sWL3}, v{V_L16}']
    s += ['v_lshrrev_b32 v1, 2, v0', 'v_mul_u32_u24 v1, 320, v1', 'v_and_b32 v2, 3, v0', 'v_bfe_u32 v3, v0, 4, 1',
          'v_xor_b32 v3, v3, v2', 'v_lshl_add_u32 v1, v3, 4, v1', 'v_and_b32 v2, 1, v0',
          f'v_lshl_add_u32 v{V_TR}, v2, 3, v1', f'v_add_u32 v{V_TR}, {SLOTB[0]}, v{V_TR}', f'v_xor_b32 v{V_TR+1}, 8, v{V_TR}']
    s += [('blk', ['s_lshr_b32 s3, s2, 3', 's_lshl_b32 s3, s3, 3', f's_add_u32 s3, s3, s{sWAVE}', 's_and_b32 s61, s3, 127',
                   f's_mul_i32 s{sPF}, s61, 2560', 's_lshr_b32 s3, s3, 7', f's_mul_i32 s3, s3, {16*128*1280}',
                   f's_add_u32 s{sPF}, s{sPF}, s3', 's_and_b32 s3, s2, 7', f's_mul_i32 s3, s3, {2*128*1280}',
                   f's_add_u32 s{sPF}, s{sPF}, s3'])]
    s += [f'v_mov_b32 v1, {OOB}', 'v_lshlrev_b32 v2, 6, v0', ('blk', ['v_cmp_gt_u32 vcc, 40, v0', f'v_cndmask_b32 v{V_PF}, v1, v2, vcc'])]
    s += [('blk', ['v_cmp_eq_u32 vcc, 0, v0', f'v_cndmask_b32 v{V_F1}, v1, v0, vcc']),
          ('blk', ['v_cmp_gt_u32 vcc, 4, v0', f'v_cndmask_b32 v{V_F4}, v1, v{V_L4}, vcc'])]
    return s


def Or(db, qb): return O0 + (db * 2 + qb) * 4
def Sr(kvb, qb): return S0 + (kvb * 2 + qb) * 4
def Qr(ks, qb): return Q0 + (ks * 2 + qb) * 4
def Pr(u, qb): return P0 + (u * 2 + qb) * 4


def kv_pieces(k, tr, tile, isv, par):
    out = []
    for i in range(4):
        def p(i=i):
            if i == 0:
                k(f's_add_u32 m0, s{sLB}, {par*65536 + isv*16384}')
                k(f's_add_u32 s{sT}, s{sGB}, {tile*32768 + isv*16384}')
            tr.vm('kv', f'buffer_load_dwordx4 v{V_L16}, {srdr(SWS)}, s{sT} offen offset:{i*1024}{KVSC()} lds')
        out.append(p)
    return out


NOS = 40


def qproj(k, tr, spins, isk):
    side = []
    side += [f's_lshl_b32 s{sGB}, s{sHEAD}, 20', f's_lshl_b32 s3, s{sRQ}, 12', f's_add_u32 s{sGB}, s{sGB}, s3',
             f's_lshl_b32 s{sLB}, s{sG}, 15', f's_add_u32 s{sLB}, s{sLB}, s3',
             f's_lshl_b32 s{sJJ}, s{sPAIR}, 1', f's_add_u32 s{sJJ}, s{sJJ}, 2', f's_sub_u32 s{sGJ}, s{sG}, s{sJJ}',
             ('blk', [f's_cmp_eq_u32 s{sG}, 1', f's_cselect_b32 s{sFIN}, s{sJJ}, 99']),
             f's_sub_u32 s{sSWI}, s{sFIN}, 1', f's_sub_u32 s{sMLO}, s{sFIN}, 2',
             f's_mov_b32 s{sBIAS}, {f32hex(BIAS)}', f's_mov_b32 s{sCLAMP}, {f32hex(-1e20)}',
             f's_mov_b32 s{sJ}, 0', f's_mov_b32 s{sFIRST}, 1', f's_mov_b32 s{sTN}, 1']
    side += [f's_lshl_b32 s3, s{sG}, 15', f'v_add_u32 v{V_KADDR}, s3, v{V_L16}', f'v_mov_b32 v{V_VADDR}, v{V_KADDR}',
             'v_and_b32 v1, 15, v0', 'v_lshrrev_b32 v2, 4, v0', 'v_lshlrev_b32 v2, 2, v2', 'v_sub_u32 v1, v1, v2',
             ('blk', [f's_lshl_b32 s3, s{sRQ}, 5', f'v_add_u32 v{V_MDB}, s3, v1']), f'v_mov_b32 v{V_NEG}, {f32hex(-1e30)}',
             ('blk', [f's_lshl_b32 s3, s{sRQ}, 13', f's_add_u32 s3, s3, {STASH}', f'v_add_u32 v{V_ST}, s3, v{V_L16}'])]
    side += [f'v_mov_b32 v{ONES+r}, 0x3f803f80' for r in range(4)]
    side.append(('at', 1))
    side += [f'v_mov_b32 v{LA+r}, 0' for r in range(8)]
    side.append(('at', 4))
    side.append(lambda: tr.vm('pl', spins.load(0xff, f's{sADD}', V_PK)))
    oset = o_setup()
    side += oset[:NOS]
    side.append(('at', 8))
    side.append(('late',))
    side.append(lambda: tr.wait(lambda t: t == 'pl'))
    side.append(('blk', spins.check(0xff, f's{sADD}', 1, V_PK, sPASS0)))
    side.append(('dl', 8))
    side.append(('ab', 9))
    side.append(lambda: tr.vm('at', f'buffer_store_dword v{V_N}, v{V_AT}, {srdr(SWS)}, s{sHROW} offen sc1'))
    side += kv_pieces(k, tr, 0, 0, 0) + kv_pieces(k, tr, 0, 1, 0)
    side += oset[NOS:]
    side.append(('ab', 13))
    side += kv_pieces(k, tr, 1, 0, 1)
    side.append(('dl', 16))
    side.append(('at', 17))
    side.append(lambda: tr.vm('pl', spins.load(0xff, f's{sADD}', V_PK)))
    side.append(f's_mov_b32 s{sT2}, {f32hex(QSCALE)}')
    side = Side(k, side)
    for q in range(20):
        side.step = q
        side.check_deadline()
        stamp(k, f'q{q}')
        ms = []
        for db in range(8):
            for qb in range(2):
                acc = QA + (db * 2 + qb) * 4
                ms.append(f'v_mfma_f32_16x16x32_bf16 {vr(acc)}, {vr(WQ[q & 1]+4*db)}, {vr(HR+(q % 8)*8+qb*4)}, {"0" if q == 0 else vr(acc)}')
        rs = qreads(q + 1) if q + 1 < 20 else []
        tr.wait(lambda t: t == ('h', q))
        k('s_waitcnt lgkmcnt(0)')
        if q in (7, 15):
            for db in range(8):
                k(f'v_add_u32 v{V_QR+db}, 0x10000, v{V_QR+db}')
        if q in (9, 13):
            if q == 9:
                tr.wait(lambda t: t[0] == 'it' or t == ('st', 3))
            k('s_barrier')
            side.bar = q
        extra = []
        if q >= 1 and q + 7 < 20:
            extra += hload(k, tr, q + 7)
        if q >= 13:
            extra += [f'v_mov_b32 v{HR+((q-1) % 8)*8+r}, 0' for r in range(8)]
        for i in range(16):
            side.slot = i // 2
            if q == 0 and i < 8 and i % 2 == 0:
                for x in kv_pack(isk, i // 2):
                    k(x)
            for _ in range(2 if i < 4 else 1):
                if rs:
                    k(rs.pop(0))
            k(ms[i])
            if q < 4 and i == 10:
                kv_store(k, tr, isk, 3, q)
            elif extra:
                x = extra.pop(0)
                x() if callable(x) else k(x)
            else:
                side.pump(1)
            if q == 19 and i >= 6 and i % 4 == 2:
                qpack(k, (i - 6) // 4)
        assert not rs and not extra
    side.step = 20
    side.pump(1000)
    assert not side.l
    qpack(k, 3)
    for r in range(8):
        k(f'v_mov_b32 v{HR+3*8+r}, 0')
    for r in range(8):
        k(f'v_mov_b32 v{NM+r}, 0')


def qpack(k, ks):
    for qb in range(2):
        a0, a1 = QA + (4 * ks + qb) * 4, QA + (4 * ks + 2 + qb) * 4
        for a in (a0, a1):
            for r in range(4):
                k(f'v_mul_f32 v{a+r}, s{sT2}, v{a+r}')
        q = Qr(ks, qb)
        k(f'v_cvt_pk_bf16_f32 v{q}, v{a0}, v{a0+1}')
        k(f'v_cvt_pk_bf16_f32 v{q+1}, v{a0+2}, v{a0+3}')
        k(f'v_cvt_pk_bf16_f32 v{q+2}, v{a1}, v{a1+1}')
        k(f'v_cvt_pk_bf16_f32 v{q+3}, v{a1+2}, v{a1+3}')


def loop_dma_pieces():
    pre = [f's_lshl_b32 s56, s{sTN}, 15',
           f's_add_u32 s56, s56, s{sGB}',
           's_add_u32 s56, s56, 16384',
           f's_and_b32 s55, s{sJ}, 1',
           's_lshl_b32 s55, s55, 16',
           f's_add_u32 s55, s55, s{sLB}',
           's_xor_b32 s57, s55, 0x14000',
           f's_add_u32 s58, s{sJ}, 2',
           's_lshl_b32 s54, s58, 1',
           f's_add_u32 s54, s54, s{sGJ}',
           f's_cmp_lt_u32 s58, s{sJJ}',
           f's_cselect_b32 s{sTN}, s58, s54',
           f's_lshl_b32 s54, s{sTN}, 15',
           f's_add_u32 s54, s54, s{sGB}',
           's_cmp_gt_u32 s58, 16',
           f's_cselect_b32 s{SK2+2}, 0, s{SWS+2}']
    if OPT.get('nodma'):
        pre.append(f's_mov_b32 s{SK2+2}, 0')
    if OPT.get('hotdma'):
        pre += [f's_mov_b32 s54, s{sGB}', f's_mov_b32 s56, s{sGB}']
    ps = []
    for i in range(4):
        ps.append((['s_mov_b32 m0, s57'] if i == 0 else []) +
                  [f'buffer_load_dwordx4 v{V_L16}, {srdr(SK2 if OPT.get("nodma") else SWS)}, s56 offen offset:{i*1024}{KVSC()} lds'])
    for i in range(4):
        ps.append((['s_mov_b32 m0, s55'] if i == 0 else []) +
                  [f'buffer_load_dwordx4 v{V_L16}, {srdr(SK2)}, s54 offen offset:{i*1024}{KVSC()} lds'])
    return pre, ps


def frag_list(pv, qk):
    L = []
    if pv:
        for u in range(2):
            for db in range(8):
                ms = [(Or(db, qb), Pr(u, qb), Or(db, qb)) for qb in range(2)]
                if db in (2, 5):
                    qb = 0 if db == 2 else 1
                    ms.append((LA + 4 * qb, Pr(u, qb), LA + 4 * qb))
                L.append((V_VADDR, 16384 + (u * 8 + db) * 1024, ms))
    if qk:
        for ks in range(4):
            for kvb in range(4):
                ms = [(Sr(kvb, qb), Qr(ks, qb), (NM + 4 * qb) if ks == 0 else Sr(kvb, qb)) for qb in range(2)]
                L.append((V_KADDR, (kvb * 4 + ks) * 1024, ms))
    return L


PF = 7


def rd(L, i):
    a, off, _ = L[i]
    return f'ds_read_b128 {vr(R0 + (i % 8) * 4)}, v{a} offset:{off}'


def prefetch(k, L):
    for i in range(min(PF, len(L))):
        k(rd(L, i))


def mfma_phase(k, L):
    n = len(L)
    for i in range(n):
        k(f's_waitcnt lgkmcnt({min(n, i + PF) - (i + 1)})')
        r = R0 + (i % 8) * 4
        ms = L[i][2]
        d, b, c = ms[0]
        k(f'v_mfma_f32_16x16x32_bf16 {vr(d)}, {vr(r)}, {vr(b)}, {vr(c)}')
        if i + PF < n:
            k(rd(L, i + PF))
        d, b, c = ms[1]
        k(f'v_mfma_f32_16x16x32_bf16 {vr(d)}, {vr(r)}, {vr(b)}, {vr(c)}')
        if len(ms) > 2:
            d, b, c = ms[2]
            k(f'v_mfma_f32_16x16x32_bf16 {vr(d)}, {vr(ONES)}, {vr(b)}, {vr(c)}')


def ctx_base(k, blk_expr):
    k(f's_lshl_b32 s54, {blk_expr}, 2')
    k(f's_add_u32 s54, s54, s{sRQ}')
    k('s_lshl_b32 s54, s54, 18')
    k(f's_lshl_b32 s55, s{sHEAD}, 12')
    k('s_add_u32 s54, s54, s55')
    k(f's_add_u32 s54, s54, {WS["ctx"]}')
    k('s_add_u32 s55, s54, 0x20000')


def finalize_b(k):
    sk = k.newlabel('nofin')
    k(f's_cmp_lg_u32 s{sJ}, s{sFIN}')
    k(f's_cbranch_scc1 {sk}')
    ctx_base(k, f's{sPAIR}')
    for qb in range(2):
        k(f'v_rcp_f32 v{T0+qb}, v{LA+4*qb}')
    for r in range(8):
        k(f'v_mov_b32 v{LA+r}, 0')
    n = 0
    for ks in range(4):
        for qb in range(2):
            a0, a1 = Or(2 * ks, qb), Or(2 * ks + 1, qb)
            t = R0 + n * 4
            n += 1
            for a in (a0, a1):
                for r in range(4):
                    k(f'v_mul_f32 v{a+r}, v{a+r}, v{T0+qb}')
            k(f'v_cvt_pk_bf16_f32 v{t}, v{a0}, v{a0+1}')
            k(f'v_cvt_pk_bf16_f32 v{t+1}, v{a0+2}, v{a0+3}')
            k(f'v_cvt_pk_bf16_f32 v{t+2}, v{a1}, v{a1+1}')
            k(f'v_cvt_pk_bf16_f32 v{t+3}, v{a1+2}, v{a1+3}')
            k(f'buffer_store_dwordx4 {vr(t)}, v{V_L16}, {srdr(SWS)}, s{54+qb} offen offset:{ks*1024} sc1')
            for a in (a0, a1):
                for r in range(4):
                    k(f'v_mov_b32 v{a+r}, 0')
    k.label(sk)


def softmax(k, last):
    lab, rare, done = k.newlabel('sm'), k.newlabel('rare'), k.newlabel('smd')
    finalize_b(k)
    pieces = []
    if not last and OPT.get('pfj', 13) < 16:
        sk = k.newlabel('nopf')
        k(f's_cmp_lg_u32 s{sJ}, {OPT.get("pfj", 13)}')
        k(f's_cbranch_scc1 {sk}')
        k(f'buffer_load_dword v53, v{V_PF}, {srdr(SO)}, s{sPF} offen')
        k.label(sk)
    if not last:
        pre, pieces = loop_dma_pieces()
        for x in pre:
            k(x)
    else:
        k(f's_add_u32 s54, s{sWG}, {16*1280}')
        for i in range(10):
            pieces.append([f's_add_u32 m0, s{sWL}, {i*1024}',
                           f'buffer_load_dwordx4 v{V_WO + i % 5}, {srdr(SO)}, s{sWG if i < 5 else 54} offen lds'])
        pieces = [pieces[0] + pieces[1]] + pieces[2:5] + [pieces[5] + pieces[6]] + pieces[7:]

    def piece():
        if pieces:
            for x in pieces.pop(0):
                k(x)
    nm = k.newlabel('nomask')
    if last:
        k(f's_lshl_b32 s3, s{sG}, 6')
    else:
        k(f's_sub_u32 s3, s{sJ}, s{sMLO}')
        k('s_cmp_ge_u32 s3, 2')
        k(f's_cbranch_scc1 {nm}')
        k('s_lshl_b32 s3, s3, 6')
    k(f'v_subrev_u32 v{V_MD}, s3, v{V_MDB}')
    for kvb in range(4):
        for qb in range(2):
            for r in range(4):
                k(f'v_cmp_le_i32 s[{94+2*r}:{95+2*r}], {16*kvb + r - 16*qb}, v{V_MD}')
            for r in range(4):
                s = Sr(kvb, qb) + r
                k(f'v_cndmask_b32 v{s}, v{V_NEG}, v{s}, s[{94+2*r}:{95+2*r}]')
    if not last:
        k.label(nm)
    k(f's_cmp_lg_u32 s{sFIRST}, 0')
    k(f's_cbranch_scc1 {rare}')
    k.label(lab)
    n = 0
    for u in range(2):
        for qb in range(2):
            t = T0 + (n & 1) * 8
            s0, s1 = Sr(2 * u, qb), Sr(2 * u + 1, qb)
            for e in range(8):
                s = (s0 + e) if e < 4 else (s1 + e - 4)
                if e in (0, 5):
                    piece()
                k(f'v_exp_f32 v{t+e}, v{s}')
            p = Pr(u, qb)
            for e in range(0, 8, 2):
                k(f'v_cvt_pk_bf16_f32 v{p+e//2}, v{t+e}, v{t+e+1}')
            if n == 0:
                k(f'v_or3_b32 v{V_TS}, v{p}, v{p+1}, v{p+2}')
                k(f'v_or_b32 v{V_TS}, v{V_TS}, v{p+3}')
            else:
                k(f'v_or3_b32 v{V_TS}, v{V_TS}, v{p}, v{p+1}')
                k(f'v_or3_b32 v{V_TS}, v{V_TS}, v{p+2}, v{p+3}')
            n += 1
    k(f'v_and_b32 v{V_TS}, 0x40004000, v{V_TS}')
    k(f'v_cmp_ne_u32 vcc, 0, v{V_TS}')
    k(f's_cbranch_vccz {done}')
    k(f's_cmp_eq_u32 s{sFIRST}, 2')
    k(f's_cbranch_scc1 {done}')
    k.label(rare)
    for qb in range(2):
        m = T0 + qb
        vals = [Sr(kvb, qb) + r for kvb in range(4) for r in range(4)]
        k(f'v_max3_f32 v{m}, v{vals[0]}, v{vals[1]}, v{vals[2]}')
        for i in range(3, 15, 2):
            k(f'v_max3_f32 v{m}, v{m}, v{vals[i]}, v{vals[i+1]}')
        k(f'v_max_f32 v{m}, v{m}, v{vals[15]}')
    for sw in ('v_permlane32_swap_b32', 'v_permlane16_swap_b32'):
        for qb in range(2):
            k(f'v_mov_b32 v{T0+2+qb}, v{T0+qb}')
        for qb in range(2):
            k(f'{sw} v{T0+qb}, v{T0+2+qb}')
        for qb in range(2):
            k(f'v_max_f32 v{T0+qb}, v{T0+qb}, v{T0+2+qb}')
    for qb in range(2):
        k(f'v_add_f32 v{T0+qb}, s{sBIAS}, v{T0+qb}')
    nf, jn = k.newlabel('nf'), k.newlabel('jn')
    k(f's_cmp_lg_u32 s{sFIRST}, 0')
    k(f's_cbranch_scc0 {nf}')
    for qb in range(2):
        k(f'v_max_f32 v{T0+qb}, s{sCLAMP}, v{T0+qb}')
    k(f's_branch {jn}')
    k.label(nf)
    for qb in range(2):
        k(f'v_max_f32 v{T0+qb}, 0, v{T0+qb}')
        k(f'v_exp_f32 v{T0+2+qb}, -v{T0+qb}')
    for qb in range(2):
        for r in range(4):
            k(f'v_mul_f32 v{LA+4*qb+r}, v{LA+4*qb+r}, v{T0+2+qb}')
        for db in range(8):
            for r in range(4):
                o = Or(db, qb) + r
                k(f'v_mul_f32 v{o}, v{o}, v{T0+2+qb}')
    k.label(jn)
    for qb in range(2):
        for r in range(4):
            k(f'v_sub_f32 v{NM+4*qb+r}, v{NM+4*qb+r}, v{T0+qb}')
        for kvb in range(4):
            for r in range(4):
                s = Sr(kvb, qb) + r
                k(f'v_sub_f32 v{s}, v{s}, v{T0+qb}')
    k(f's_mov_b32 s{sFIRST}, 2')
    k(f's_branch {lab}')
    k.label(done)
    k(f's_mov_b32 s{sFIRST}, 0')
    if not last:
        sk = k.newlabel('nosw')
        k(f's_cmp_lg_u32 s{sJ}, s{sSWI}')
        k(f's_cbranch_scc1 {sk}')
        for i in range(8):
            k(f'ds_read_b128 {vr(Q0+4*i)}, v{V_ST} offset:{i*1024}')
        for r in range(8):
            k(f'v_mov_b32 v{NM+r}, 0')
        k(f's_mov_b32 s{sFIRST}, 1')
        k.label(sk)


def istamp(k, r, lane=None):
    if not OPT.get('its'):
        return
    k('s_memtime s[62:63]')
    k('s_waitcnt lgkmcnt(0)')
    if lane is None:
        k(f'v_cmp_eq_u32 vcc, s{sJ}, v0')
        k(f'v_mov_b32 v36, s62')
        k(f'v_cndmask_b32 v{r}, v{r}, v36, vcc')
    else:
        k(f'v_writelane_b32 v{r}, s62, {lane}')


def attention(k, spins):
    k('s_waitcnt vmcnt(0)')
    for x in spins.check(0xff, f's{sADD}', 2, V_PK, sPASS0):
        k(x)
    k('s_barrier')
    istamp(k, 35, 0)
    stamp(k, 'att')
    l1 = k.newlabel('a')
    k(f's_cmp_lg_u32 s{sG}, 0')
    k(f's_cbranch_scc1 {l1}')
    for i in range(8):
        k(f'ds_write_b128 v{V_ST}, {vr(Q0+4*i)} offset:{i*1024}')
    k(f's_lshr_b32 s54, s{sWL2}, 4')
    k(f's_lshr_b32 s55, s{sWL3}, 4')
    for c in range(5):
        for x in wo_voff(V_WM[c], 54, c):
            k(x)
    for c in range(4):
        for x in wo_voff(V_WE[c], 55, c):
            k(x)
    if OPT.get('inv'):
        l0 = k.newlabel('ninv')
        k(f's_cmp_lg_u32 s{sWAVE}, 0')
        k(f's_cbranch_scc1 {l0}')
        k('buffer_inv sc1')
        k.label(l0)
    k('s_waitcnt lgkmcnt(0)')
    k('s_barrier')
    k.label(l1)
    L = frag_list(False, True)
    k('s_setprio 1')
    prefetch(k, L)
    mfma_phase(k, L)
    k('s_setprio 0')
    k(f'v_xor_b32 v{V_KADDR}, 0x10000, v{V_KADDR}')
    k('s_barrier')
    loop = k.newlabel('loop')
    k.label(loop)
    istamp(k, 32)
    softmax(k, False)
    istamp(k, 33)
    L = frag_list(True, True)
    prefetch(k, L)
    k('s_barrier')
    k('s_setprio 1')
    mfma_phase(k, L)
    k('s_setprio 0')
    istamp(k, 34)
    k(f'v_xor_b32 v{V_KADDR}, 0x10000, v{V_KADDR}')
    k(f'v_xor_b32 v{V_VADDR}, 0x10000, v{V_VADDR}')
    k('s_waitcnt vmcnt(0)')
    flag_if_fin(k)
    k(f's_add_u32 s{sJ}, s{sJ}, 1')
    istamp(k, 35)
    k('s_barrier')
    k(f's_cmp_lt_u32 s{sJ}, 16')
    k(f's_cbranch_scc1 {loop}')
    istamp(k, 32)
    stamp(k, 's16a')
    softmax(k, True)
    stamp(k, 's16b')
    k(spins.load(0xf, f's{sPOL}', V_F4))
    L = frag_list(True, False)
    prefetch(k, L)
    k('s_barrier')
    k('s_setprio 1')
    mfma_phase(k, L)
    k('s_setprio 0')
    stamp(k, 'm16')
    k('s_waitcnt vmcnt(0)')
    stamp(k, 'w16')
    flag_if_fin(k)
    k('s_barrier')
    g0p, kl = k.newlabel('g0p'), k.newlabel('kl')
    k(f's_cmp_eq_u32 s{sG}, 0')
    k(f's_cbranch_scc1 {g0p}')
    for i in range(16):
        k(f'ds_write_b128 v{V_EX}, {vr(O0+4*i)} offset:{i*1024}')
    l1, l2 = k.newlabel('nb'), k.newlabel('nb')
    for x in spins.test(0xf, 1, None):
        k(x)
    k('s_cselect_b32 s54, 1, 0')
    k(f's_cbranch_scc0 {l1}')
    ctx_loads(k, 0, 8)
    k.label(l1)
    ST = 160
    k(f'v_mov_b32 v{ST}, v{NM}')
    k(f'v_mov_b32 v{ST+1}, v{NM+4}')
    k(f'v_mov_b32 v{ST+2}, v{LA}')
    k(f'v_mov_b32 v{ST+3}, v{LA+4}')
    k('s_waitcnt lgkmcnt(0)')
    k('s_barrier')
    stamp(k, 'x1')
    k(f'ds_write_b128 v{V_SA}, {vr(ST)}')
    k('s_waitcnt lgkmcnt(0)')
    k('s_barrier')
    for x in wreads(0):
        k(x)
    k('s_cmp_eq_u32 s54, 1')
    k(f's_cbranch_scc1 {kl}')
    for x in spins.check(0xf, f's{sPOL}', 1, V_F4, None):
        k(x)
    ctx_loads(k, 0, 8)
    k(f's_branch {kl}')
    k.label(g0p)
    stamp(k, 'x1')
    k('s_setprio 2')
    EX = 128
    for i in range(16):
        k(f'ds_read_b128 {vr(EX+4*i)}, v{V_EX} offset:{i*1024}')
    ctx_base(k, f's{sBLK}')
    k('s_barrier')
    k(f'ds_read_b128 {vr(T0+8)}, v{V_SA}')
    k('s_waitcnt lgkmcnt(0)')
    stamp(k, 'c1')
    for qb in range(2):
        k(f'v_min_f32 v{T0+12+qb}, v{NM+4*qb}, v{T0+8+qb}')
    for qb in range(2):
        k(f'v_sub_f32 v{T0+qb}, v{T0+12+qb}, v{NM+4*qb}')
        k(f'v_sub_f32 v{T0+8+qb}, v{T0+12+qb}, v{T0+8+qb}')
    for qb in range(2):
        k(f'v_exp_f32 v{T0+qb}, v{T0+qb}')
        k(f'v_exp_f32 v{T0+8+qb}, v{T0+8+qb}')
    for qb in range(2):
        k(f'v_mul_f32 v{T0+2+qb}, v{LA+4*qb}, v{T0+qb}')
        k(f'v_fma_f32 v{T0+2+qb}, v{T0+10+qb}, v{T0+8+qb}, v{T0+2+qb}')
    for qb in range(2):
        k(f'v_rcp_f32 v{T0+2+qb}, v{T0+2+qb}')
    for qb in range(2):
        k(f'v_mul_f32 v{T0+qb}, v{T0+qb}, v{T0+2+qb}')
        k(f'v_mul_f32 v{T0+8+qb}, v{T0+8+qb}, v{T0+2+qb}')
    wp = []
    for i in range(16):
        wp.append(([f's_add_u32 s56, s{sWG2}, {(i//5)*16*1280}'] if i % 5 == 0 else []) +
                  [f's_add_u32 m0, s{sWL2}, {i*1024}',
                   f'buffer_load_dwordx4 v{V_WM[i % 5]}, {srdr(SO)}, s56 offen lds'])
    for i in range(4):
        wp.append([f's_add_u32 m0, s{sWL3}, {i*1024}',
                   f'buffer_load_dwordx4 v{V_WE[i]}, {srdr(SO)}, s{sWG2} offen lds'])
    WEARLY = OPT.get('wearly', 0)
    for ks in range(4):
        for qb in range(2):
            for dd in range(2):
                o = Or(2 * ks + dd, qb)
                p = EX + (o - O0)
                for r in range(4):
                    k(f'v_mul_f32 v{o+r}, v{o+r}, v{T0+qb}')
                for r in range(4):
                    k(f'v_fma_f32 v{o+r}, v{p+r}, v{T0+8+qb}, v{o+r}')
            a0, a1 = Or(2 * ks, qb), Or(2 * ks + 1, qb)
            t = R0 + (ks * 2 + qb) * 4
            k(f'v_cvt_pk_bf16_f32 v{t}, v{a0}, v{a0+1}')
            k(f'v_cvt_pk_bf16_f32 v{t+1}, v{a0+2}, v{a0+3}')
            k(f'v_cvt_pk_bf16_f32 v{t+2}, v{a1}, v{a1+1}')
            k(f'v_cvt_pk_bf16_f32 v{t+3}, v{a1+2}, v{a1+3}')
            k(f'buffer_store_dwordx4 {vr(t)}, v{V_L16}, {srdr(SWS)}, s{54+qb} offen offset:{ks*1024} sc1')
    stamp(k, 'c2')
    WFL = OPT.get('wfl', 8)
    for g in wp[:WFL]:
        for x in g:
            k(x)
    k(f's_waitcnt vmcnt({WFL})')
    k(f'buffer_store_dword v{V_ONE}, v{V_F1}, {srdr(SWS)}, s{sFLG} offen sc1')
    stamp(k, 'fl')
    for g in wp[WFL:]:
        for x in g:
            k(x)
    stamp(k, 'c3')
    k(spins.load(0xf, f's{sPOL}', V_F4))
    for x in wreads(0):
        k(x)
    k('s_waitcnt vmcnt(1)')
    k('s_barrier')
    stamp(k, 'x4')
    k('s_waitcnt vmcnt(0)')
    for x in spins.check(0xf, f's{sPOL}', 1, V_F4, None):
        k(x)
    ctx_loads(k, 0, 8)
    k('s_setprio 0')
    k.label(kl)
    stamp(k, 'kl')
    for s in range(16):
        k(f's_waitcnt vmcnt({2*(min(s+7, 15)-s)})')
        k('s_waitcnt lgkmcnt(0)')
        stamp(k, f'k{s}')
        if s % 4 == 3 and s < 15:
            d = SLOTB[s // 4 + 1] - SLOTB[s // 4]
            for b in range(2):
                k(f'v_add_u32 v{V_TR+b}, {d & 0xffffffff}, v{V_TR+b}')
        if s == 7:
            nb_ = k.newlabel('nx4')
            k(f's_cmp_eq_u32 s{sG}, 0')
            k(f's_cbranch_scc1 {nb_}')
            k('s_barrier')
            k.label(nb_)
        ms = []
        for nb in range(10):
            for rb in range(2):
                acc = OACC + (rb * 10 + nb) * 4
                c = '0' if s == 0 else vr(acc)
                ms.append(f'v_mfma_f32_16x16x32_bf16 {vr(acc)}, {vr(WFR[s & 1][nb])}, {vr(CX + (s % 8)*8 + rb*4)}, {c}')
        rs = wreads(s + 1) if s + 1 < 16 else []
        for i in range(20):
            k(ms[i])
            for _ in range(2 if i < 6 else 1):
                if rs:
                    k(rs.pop(0))
        assert not rs
        if s + 8 < 16:
            ctx_loads(k, s + 8, s + 9)
    stamp(k, 'ke')
    k('v_bfe_u32 v1, v0, 4, 1')
    k('v_cmp_eq_u32 vcc, 1, v1')
    n = 0
    for rb in range(2):
        for j in range(5):
            a0, a1 = OACC + (rb * 10 + 2 * j) * 4, OACC + (rb * 10 + 2 * j + 1) * 4
            t = 32 + (n % 4) * 8
            n += 1
            k(f'v_cvt_pk_bf16_f32 v{t}, v{a0}, v{a0+1}')
            k(f'v_cvt_pk_bf16_f32 v{t+1}, v{a0+2}, v{a0+3}')
            k(f'v_cvt_pk_bf16_f32 v{t+2}, v{a1}, v{a1+1}')
            k(f'v_cvt_pk_bf16_f32 v{t+3}, v{a1+2}, v{a1+3}')
            k(f'v_cndmask_b32 v{t+4}, v{t}, v{t+2}, vcc')
            k(f'v_cndmask_b32 v{t+5}, v{t+1}, v{t+3}, vcc')
            k(f'v_cndmask_b32 v{t+6}, v{t+2}, v{t}, vcc')
            k(f'v_cndmask_b32 v{t+7}, v{t+3}, v{t+1}, vcc')
            k(f's_add_u32 s3, s{sPB}, {rb*20480 + j*1024}')
            k(f'buffer_store_dwordx4 {vr(t+4)}, v{V_L16}, {srdr(SWS)}, s3 offen {OPT.get("pst", "").replace("+", " ")}')


V_WM = [32, 33, 34, 35, 36]
V_WE = [37, 38, 39, 52]


def flag_if_fin(k):
    sk = k.newlabel('nofl')
    k(f's_cmp_lg_u32 s{sJ}, s{sFIN}')
    k(f's_cbranch_scc1 {sk}')
    k(f'buffer_store_dword v{V_ONE}, v{V_F1}, {srdr(SWS)}, s{sFLG} offen sc1')
    k.label(sk)


def ctx_loads(k, s0, s1):
    for s in range(s0, s1):
        hd, ks = s // 4, s % 4
        for rb in range(2):
            r = CX + (s % 8) * 8 + rb * 4
            so = f's{sCX0+rb}'
            if HOFF[hd]:
                k(f's_add_u32 s3, s{sCX0+rb}, {HOFF[hd]*4096}')
                so = 's3'
            k(f'buffer_load_dwordx4 {vr(r)}, v{V_L16}, {srdr(SWS)}, {so} offen offset:{ks*1024} sc1')


def wreads(s):
    out = []
    for j in range(5):
        for b in range(2):
            for t in range(2):
                r = WFR[s & 1][2 * j + b] + 2 * t
                out.append(f'ds_read_b64_tr_b16 v[{r}:{r+1}], v{V_TR+b} offset:{64*j + 5120*t + 10240*(s % 4)}')
    return out


def build_k1():
    k = Kern('k1')
    k('s_cmp_ge_u32 s2, 256')
    k('s_cbranch_scc1 k1_end')
    tstart(k)
    it, slot, issue, scr = ring_plan()
    tr = Tracker(k)
    spins = Spins(k)
    prologue(k, tr, it, slot, scr)
    issued0 = list(tr.issued)
    k(f's_cmp_lg_u32 s{sISV}, 0')
    k('s_cbranch_scc1 k1_vpath')
    for isk in (True, False):
        tr.issued[:] = issued0
        if not isk:
            k.label('k1_vpath')
        kv_main(k, tr, spins, it, slot, issue, isk, scr)
        stamp(k, 'kv')
        qproj(k, tr, spins, isk)
        if isk:
            k('s_branch k1_att')
    k.label('k1_att')
    attention(k, spins)
    if OPT.get('its'):
        k(f's_lshl_b32 s3, s2, 3')
        k(f's_add_u32 s3, s3, s{sWAVE}')
        k(f's_lshl_b32 s3, s3, 10')
        k(f's_add_u32 s3, s3, {208 << 20}')
        k(f'buffer_store_dwordx4 v[32:35], v{V_L16}, {srdr(SWS)}, s3 offen')
    tdump(k, 8, SWS, 0)
    k('s_endpgm')
    spins.emit()
    k.label('k1_end')
    return k, 256, 512, 163840, 256
```

```python
from asmgen import *
import asmgen
import math
import struct

OPT = dict(rate=2, ntl='mw', pfw=2)
OOB = 0x40000000
NPRE = 4
BIAS = 60.0
QSCALE = math.log2(math.e) / math.sqrt(128.0)


def f32hex(x):
    return hex(struct.unpack('<I', struct.pack('<f', x))[0])


def vr(b, n=4):
    return f'v[{b}:{b+n-1}]'


SX, SW, SQ, SWS, SK2, SD, SXI, SC, SM = 24, 28, 32, 36, 40, 44, 48, 52, 56
sG, sRQ, sHEAD, sISV, sTQ, sPAIR, sCB, sT2, sL, sXB, sWB, sT, sKVS, sHROW, sADD = 4, 5, 6, 7, 8, 9, 10, 11, 12, 13, 14, 15, 16, 17, 18
sPASS, sH0, sH1, sWAVE, sBLK = 19, 20, 21, 22, 23
V_XD, V_WD, V_XR, V_WR = 4, 6, 8, 14
V_L16, V_L4, V_AT, V_PL = 20, 21, 22, 23
V_N = 24
V_POLL, V_ONE, V_PK = 29, 30, 31
sPASS0 = 60
PK = 48
XF = [64, 80]
ACC = 96
V_QR = 32
V_HV = 14
HR = 192
WQ = [128, 160]
QA = 64


def wreg(ks, nb):
    return (192 + ks * 8 if ks < 8 else 128 + (ks - 8) * 8) + nb * 4


def NTM():
    return ' nt' if 'm' in OPT.get('ntl', '') else ''


def stamp(k, name):
    names = OPT.get('ts', 'p1,s16,s32,s48,kv,att,x1').split(',')
    if name in names:
        tstamp(k, 1 + names.index(name))


def KVSC():
    return '' if OPT.get('plain') else ' sc1'


def srdr(b):
    return f's[{b}:{b+3}]'


class Tracker:
    def __init__(self, k):
        self.k = k
        self.issued = []

    def vm(self, tag, text):
        self.k(text)
        self.issued.append(tag)

    def wait(self, pred):
        last = -1
        for idx, t in enumerate(self.issued):
            if pred(t):
                last = idx
        assert last >= 0
        n = len(self.issued) - 1 - last
        assert n <= 63
        self.k(f's_waitcnt vmcnt({n})')


def items_list():
    it = []
    for S in range(8):
        it += [('x', S), ('w', S)]
    it += [('x', S) for S in range(8, 32)]
    it += [('q', S) for S in range(10)]
    return it


def bar_steps():
    return [s for s in range(1, 64, 2) if s < 16 or s % 4 == 3]


def ring_plan():
    it = items_list()
    slot, avail = {}, {}
    for i in range(9):
        slot[i] = i
        avail[i] = -1
    nxt = 9
    bars = bar_steps()
    for S in range(32):
        b = min(x for x in bars if x >= 2 * S + 1)
        free = [slot[it.index(('x', S))]]
        if S < 8:
            free.append(slot[it.index(('w', S))])
        if S == 15:
            free.append(9)
        for f in free:
            if nxt < len(it):
                slot[nxt] = f
                avail[nxt] = b
                nxt += 1
    assert nxt == len(it)
    perm = {slot[40 + q]: q for q in range(10)}
    assert len(perm) == 10
    slot = {i: perm[s] for i, s in slot.items()}
    return it, slot, avail, perm[9]


def wavesum(side, r, t):
    for sh in (1, 2, 4, 8):
        side.append(f'v_add_f32_dpp v{r}, v{r}, v{r} row_ror:{sh} row_mask:0xf bank_mask:0xf')
    for w in ('16', '32'):
        side.append(f'v_mov_b32 v{t}, v{r}')
        side.append(f'v_permlane{w}_swap_b32 v{r}, v{t}')
        side.append(f'v_add_f32 v{r}, v{r}, v{t}')


def rnd1(side, r):
    side.append(f'v_cvt_pk_bf16_f32 v{r}, v{r}, v{r}')
    side.append(f'v_lshlrev_b32 v{r}, 16, v{r}')


FLG = WS['modp'] + 0x10000


FLG2 = FLG + 0x4000


class Spins:
    def __init__(self, k):
        self.k = k
        self.l = []

    def test(self, kind, target, spass):
        if kind == 'cnt':
            out = [f'v_readfirstlane_b32 s3, v{V_POLL}']
            if spass:
                out.append(f's_or_b32 s3, s3, s{spass}')
            out.append(f's_cmp_ge_u32 s3, {target}')
        else:
            out = [f'v_cmp_le_u32 vcc, {target}, v{V_POLL}']
            out.append(f's_or_b32 s3, vcc_lo, s{spass}' if spass else 's_mov_b32 s3, vcc_lo')
            out += [f's_and_b32 s3, s3, {kind}', f's_cmp_eq_u32 s3, {kind}']
        return out

    def load(self, kind, soff, va):
        if kind == 'cnt':
            return f'buffer_load_dword v{V_POLL}, v{va}, {srdr(SD)}, 0 offen sc1'
        return f'buffer_load_dword v{V_POLL}, v{va}, {srdr(SWS)}, {soff} offen sc1'

    def check(self, kind, soff, target, va, spass):
        k = self.k
        sp, back = k.newlabel('spin'), k.newlabel('back')
        out = self.test(kind, target, spass) + [f's_cbranch_scc0 {sp}', back + ':']
        self.l.append((sp, back, kind, soff, target, va))
        return out

    def emit(self):
        k = self.k
        for sp, back, kind, soff, target, va in self.l:
            k.label(sp)
            k(f's_mov_b32 s{sT2}, 0')
            lp = k.newlabel('lp')
            k.label(lp)
            k(f's_sleep {OPT.get("slp", 4)}')
            k(self.load(kind, soff, va))
            k('s_waitcnt vmcnt(0)')
            k(f's_add_u32 s{sT2}, s{sT2}, 1')
            k(f's_cmp_ge_u32 s{sT2}, 0x4000')
            k(f's_cbranch_scc1 {back}')
            for x in self.test(kind, target, None):
                k(x)
            k(f's_cbranch_scc0 {lp}')
            k(f's_branch {back}')


def prologue(k, tr, it, slot, scr):
    k(f's_load_dwordx8 s[76:83], s[0:1], 0')
    k(f's_load_dwordx2 s[84:85], s[0:1], 32')
    k(f's_load_dwordx8 s[88:95], s[0:1], 88')
    k(f's_load_dwordx2 s[96:97], s[0:1], 120')
    k(f's_load_dwordx2 s[64:65], s[0:1], 40')
    k('v_lshrrev_b32 v1, 6, v0')
    k(f'v_readfirstlane_b32 s{sWAVE}, v1')
    k('v_lshrrev_b32 v1, 1, v0')
    k('v_and_b32 v2, 1, v0')
    k('v_lshlrev_b32 v184, 1, v1')
    k('v_mul_u32_u24 v185, 7680, v1')
    k('v_lshl_add_u32 v185, v2, 4, v185')
    k('v_lshrrev_b32 v1, 4, v0')
    k('v_lshl_add_u32 v1, v1, 1, v2')
    k('v_lshlrev_b32 v1, 5, v1')
    k(f'v_add_u32 v163, {scr*16384}, v1')
    k('v_and_b32 v0, 63, v0')
    k(f's_lshr_b32 s{sG}, s{sWAVE}, 2')
    k(f's_and_b32 s{sRQ}, s{sWAVE}, 3')
    k(f's_and_b32 s3, s2, 7')
    k(f's_lshr_b32 s{sT}, s2, 3')
    k(f's_lshl_b32 s{sCB}, s3, 5')
    k(f's_add_u32 s{sCB}, s{sCB}, s{sT}')
    k(f's_lshl_b32 s{sHEAD}, s3, 1')
    k(f's_and_b32 s3, s{sT}, 1')
    k(f's_add_u32 s{sHEAD}, s{sHEAD}, s3')
    k(f's_and_b32 s3, s{sT}, 2')
    k(f's_lshl_b32 s3, s3, 3')
    k(f's_add_u32 s{sHEAD}, s{sHEAD}, s3')
    k(f's_lshr_b32 s{sPAIR}, s{sT}, 2')
    k(f's_and_b32 s{sISV}, s{sPAIR}, 1')
    k(f's_lshr_b32 s{sTQ}, s{sT}, 3')
    k(f's_lshl_b32 s{sL}, s{sWAVE}, 11')
    k(f's_lshl_b32 s{sXB}, s{sTQ}, 17')
    k(f's_lshl_b32 s3, s{sWAVE}, 14')
    k(f's_add_u32 s{sXB}, s{sXB}, s3')
    k(f's_lshl_b32 s{sWB}, s{sWAVE}, 15')
    k(f's_lshl_b32 s3, s{sHEAD}, 8')
    k(f's_add_u32 s{sWB}, s{sWB}, s3')
    k('v_lshrrev_b32 v1, 3, v0')
    k('v_lshlrev_b32 v1, 10, v1')
    k('v_and_b32 v2, 7, v0')
    k('v_lshrrev_b32 v3, 4, v0')
    k('v_xor_b32 v2, v2, v3')
    k(f'v_lshl_or_b32 v{V_XD}, v2, 4, v1')
    k(f'v_xor_b32 v{V_XD+1}, 64, v{V_XD}')
    k(f'v_add_u32 v{V_XD+1}, {8192-1024}, v{V_XD+1}')
    k('v_and_b32 v2, 15, v0')
    k('v_lshlrev_b32 v1, 1, v3')
    k('v_xor_b32 v2, v2, v1')
    k(f's_lshl_b32 s3, s{sWAVE}, 2')
    k('s_and_b32 s3, s3, 8')
    k('v_xor_b32 v2, s3, v2')
    k('v_lshlrev_b32 v1, 13, v3')
    k(f'v_lshl_or_b32 v{V_WD}, v2, 4, v1')
    k(f'v_add_u32 v{V_WD+1}, {32*8192-1024}, v{V_WD}')
    k(f'v_lshlrev_b32 v{V_L16}, 4, v0')
    k(f'v_lshlrev_b32 v{V_L4}, 2, v0')
    k(f's_lshl_b32 s{sHROW}, s2, 3')
    k(f's_add_u32 s{sHROW}, s{sHROW}, s{sWAVE}')
    k(f's_mul_i32 s{sHROW}, s{sHROW}, 1280')
    k(f's_lshl_b32 s{sT2}, s{sCB}, 5')
    k('s_waitcnt lgkmcnt(0)')
    srd(k, SX, 78, SIZE['ckv'])
    k(f's_cmp_eq_u32 s{sISV}, 0')
    k(f's_cselect_b32 s{SW}, s82, s84')
    k(f's_cselect_b32 s{SW+1}, s83, s85')
    k(f's_mov_b32 s{SW+2}, {SIZE["wuk"]}')
    k(f's_mov_b32 s{SW+3}, 0x00020000')
    srd(k, SC, 88, SIZE['c'])
    srd(k, SM, 90, SIZE['wmod'])
    srd(k, SXI, 76, SIZE['x'])
    for p in range(3):
        tr.vm('c', f'buffer_load_ushort v{160+p}, v184, {srdr(SC)}, 0 offen offset:{p*512}')
    for p in range(3):
        k(f's_add_u32 s{sT}, s{sT2}, {p*256*7680}')
        tr.vm(('m', p), f'buffer_load_dwordx4 {vr(164+4*p)}, v185, {srdr(SM)}, s{sT} offen{NTM()}')
    tr.vm('xi', f'buffer_load_dwordx4 {vr(V_N)}, v{V_L16}, {srdr(SXI)}, s{sHROW} offen{NTM()}')
    tr.vm('xi', f'buffer_load_dword v{V_N+4}, v{V_L4}, {srdr(SXI)}, s{sHROW} offen offset:1024{NTM()}')
    for i in range(NPRE):
        for g in dma_item(k, tr, it, slot, i):
            g()
    srd(k, SQ, 80, SIZE['wq'])
    k('v_lshlrev_b32 v1, 7, v0')
    k(f'v_cmp_gt_u32 vcc, {OPT.get("npx", 32)}, v0')
    k(f'v_mov_b32 v2, {OOB}')
    k(f'v_cndmask_b32 v{PK+2}, v2, v1, vcc')
    k('v_lshrrev_b32 v1, 1, v0')
    k('v_lshlrev_b32 v1, 13, v1')
    k(f'v_and_b32 v{PK+3}, 1, v0')
    k(f'v_lshl_add_u32 v1, v{PK+3}, 7, v1')
    k('v_cmp_gt_u32 vcc, 20, v0')
    k(f'v_cndmask_b32 v{PK+3}, v2, v1, vcc')
    if OPT.get('pfw', 1):
        k('v_lshrrev_b32 v1, 2, v0')
        k('v_lshlrev_b32 v1, 19, v1')
        k(f'v_bfe_u32 v{PK+4}, v0, 1, 1')
        k(f'v_lshl_add_u32 v1, v{PK+4}, 13, v1')
        k(f'v_and_b32 v{PK+4}, 1, v0')
        k(f'v_lshl_add_u32 v1, v{PK+4}, 7, v1')
        k('v_cmp_gt_u32 vcc, 24, v0')
        k(f'v_cndmask_b32 v1, v2, v1, vcc')
        k(f's_lshl_b32 s3, s{sTQ}, 3')
        k(f's_add_u32 s3, s3, s{sWAVE}')
        k(f's_lshl_b32 s3, s3, 14')
        k(f's_lshl_b32 s{sT}, s{sHEAD}, 8')
        k(f's_add_u32 s3, s3, s{sT}')
        k(f's_add_u32 s3, s3, {2*64*8192}')
        tr.vm('pf', f'buffer_load_dword v{PK+4}, v1, {srdr(SW)}, s3 offen{" nt" if OPT.get("pfw", 1) == 2 else ""}')
    if OPT.get('pfa', 1):
        k('s_lshr_b32 s3, s2, 3')
        k('s_lshl_b32 s3, s3, 3')
        k(f's_add_u32 s3, s3, s{sWAVE}')
        k(f's_lshl_b32 s3, s3, 12')
        tr.vm('pf', f'buffer_load_dword v{PK+5}, v{PK+2}, {srdr(SX)}, s3 offen')
    srd(k, SWS, 96, SIZE['ws'])
    srd(k, SK2, 96, SIZE['ws'])
    srd(k, SD, 94, 256)
    k('v_and_b32 v1, 15, v0')
    k('v_lshrrev_b32 v2, 1, v1')
    k('v_xor_b32 v2, v2, v3')
    k(f's_lshl_b32 s3, s{sG}, 13')
    k('v_lshlrev_b32 v1, 7, v1')
    k('v_add_u32 v1, s3, v1')
    k(f'v_lshl_or_b32 v{V_XR}, v2, 4, v1')
    k(f'v_xor_b32 v{V_XR+1}, 64, v{V_XR}')
    for w in (1, 2):
        for a in range(2):
            k(f'v_add_u32 v{V_XR+2*w+a}, {w*65536}, v{V_XR+a}')
    k('v_bfe_u32 v1, v0, 2, 2')
    k('v_lshlrev_b32 v2, 8, v1')
    k('v_lshl_add_u32 v2, v3, 12, v2')
    k('v_and_b32 v47, 1, v3')
    k('v_lshl_add_u32 v1, v47, 2, v1')
    k('v_lshlrev_b32 v1, 1, v1')
    k('v_bfe_u32 v47, v0, 1, 1')
    k('v_xor_b32 v1, v1, v47')
    k('v_lshl_add_u32 v2, v1, 4, v2')
    k('v_and_b32 v1, 1, v0')
    k('v_lshl_add_u32 v47, v1, 3, v2')
    k(f's_lshl_b32 s3, s{sRQ}, 6')
    k(f'v_xor_b32 v{V_WR}, s3, v47')
    k(f'v_xor_b32 v{V_WR+1}, 32, v{V_WR}')
    for w in (1, 2):
        for a in range(2):
            k(f'v_add_u32 v{V_WR+2*w+a}, {w*65536}, v{V_WR+a}')
    k(f's_mov_b32 s{sT}, {OOB}')
    k(f's_cmp_eq_u32 s{sWAVE}, 0')
    k(f's_cselect_b32 s3, 0, s{sT}')
    k(f's_cselect_b32 s{sPASS0}, 0, 0xffff')
    k(f'v_mov_b32 v1, s{sT}')
    k('v_cmp_eq_u32 vcc, 0, v0')
    k(f'v_mov_b32 v2, s3')
    k(f'v_cndmask_b32 v{V_AT}, v1, v2, vcc')
    k(f'v_add_u32 v2, s3, v{V_L4}')
    k('v_cmp_gt_u32 vcc, 16, v0')
    k(f'v_cndmask_b32 v{V_PK}, v1, v2, vcc')
    k(f's_cmp_eq_u32 s{sRQ}, 0')
    k(f's_cselect_b32 s3, 0, s{sT}')
    k(f's_cselect_b32 s{sPASS}, 0, 0xffff')
    k(f'v_add_u32 v2, s3, v{V_L4}')
    k(f'v_cndmask_b32 v{V_PL}, v1, v2, vcc')
    k(f'v_mov_b32 v{V_ONE}, 1')
    k(f'v_mov_b32 v35, 0')
    k(f's_lshl_b32 s3, s{sCB}, 8')
    k(f's_add_u32 s3, s3, {FLG}')
    k(f's_cmp_lt_u32 s{sCB}, 48')
    k(f's_cselect_b32 s3, s3, s{sT}')
    tr.vm('ms', f'buffer_store_dword v35, v{V_PK}, {srdr(SWS)}, s3 offen sc1')
    k(f's_lshl_b32 s3, s{sCB}, 8')
    k(f's_add_u32 s3, s3, {FLG2}')
    k(f's_lshl_b32 s61, s{sWAVE}, 5')
    k(f's_add_u32 s61, s61, s{sCB}')
    k(f's_cmp_lt_u32 s61, 32')
    k(f's_cselect_b32 s3, s3, s{sT}')
    tr.vm('ms', f'buffer_store_dword v35, v{V_L4}, {srdr(SWS)}, s3 offen sc1')
    k(f's_cmp_eq_u32 s{sWAVE}, 0')
    k(f's_cselect_b32 s3, 0, s{sT}')
    k(f's_cmp_lt_u32 s{sCB}, 240')
    k(f's_cselect_b32 s3, s3, s{sT}')
    k('v_lshlrev_b32 v2, 1, v0')
    k('v_add_u32 v2, s3, v2')
    k('v_and_b32 v33, 0x31, v0')
    k('v_cmp_eq_u32 vcc, 0, v33')
    k('v_cndmask_b32 v33, v1, v2, vcc')
    k('v_and_b32 v1, 15, v0')
    k('v_lshlrev_b32 v1, 2, v1')
    k('v_lshl_add_u32 v1, v3, 9, v1')
    k(f'v_add_u32 v32, {scr*16384}, v1')
    k(f's_sub_u32 s3, s{sCB}, 40')
    k(f's_cmp_lt_u32 s3, 40')
    k(f's_cselect_b32 s{sADD}, 1.0, 0')
    k(f's_sub_u32 s3, s{sCB}, 160')
    k(f's_cmp_lt_u32 s3, 40')
    k(f's_cselect_b32 s{sADD}, 1.0, s{sADD}')
    k(f's_lshl_b32 s{sKVS}, s{sHEAD}, 20')
    k(f's_lshl_b32 s3, s{sTQ}, 16')
    k(f's_add_u32 s{sKVS}, s{sKVS}, s3')
    k(f's_lshl_b32 s3, s{sG}, 15')
    k(f's_add_u32 s{sKVS}, s{sKVS}, s3')
    k(f's_lshl_b32 s3, s{sRQ}, 10')
    k(f's_lshl_b32 s3, s3, s{sISV}')
    k(f's_add_u32 s{sKVS}, s{sKVS}, s3')
    k(f's_lshl_b32 s3, s{sISV}, 14')
    k(f's_add_u32 s{sKVS}, s{sKVS}, s3')
    k(f's_sub_u32 s3, 15, s{sPAIR}')
    k(f's_cmp_eq_u32 s{sG}, 0')
    k(f's_cselect_b32 s{sBLK}, s3, s{sPAIR}')
    k(f's_lshl_b32 s3, s{sBLK}, 2')
    k(f's_add_u32 s3, s3, s{sRQ}')
    k(f's_mul_i32 s3, s3, {2*20480}')
    k(f's_add_u32 s{sH0}, s3, {WS["h"]}')
    k(f's_lshr_b32 s3, s2, 1')
    k(f's_mul_i32 s{sH1}, s3, 20480')
    k(f's_and_b32 s3, s2, 1')
    k(f's_lshl_b32 s3, s3, 7')
    k(f's_add_u32 s{sH1}, s{sH1}, s3')
    k(f's_add_u32 s{sH1}, s{sH1}, {WS["h"]}')
    for x in pre_stream(k, tr):
        x() if callable(x) else k(x)
    k('s_waitcnt lgkmcnt(0)')


def dma_item(k, tr, it, slot, i):
    typ, S = it[i]
    if typ == 'x':
        base, off, s, v = sXB, (S // 8) * 4 * 131072 + (S % 8) * 128, SX, V_XD
    else:
        base, off, s, v = sWB, S * 64 * 8192, (SW if typ == 'w' else SQ), V_WD

    nt = ' nt' if typ in OPT.get('ntl', '') else ''
    if OPT.get('hotx') and typ == 'x':
        off = 0
    if OPT.get('nold') and i >= 9:
        off = OOB

    if OPT.get('skipdma') and i >= NPRE and (OPT['skipdma'] == 1 or typ == 'w'):
        return [lambda: None, lambda: None]

    def p0():
        k(f's_add_u32 m0, s{sL}, {slot[i]*16384}')
        k(f's_add_u32 s{sT}, s{base}, {off}')
        tr.vm(('it', i), f'buffer_load_dwordx4 v{v}, {srdr(s)}, s{sT} offen{nt} lds')

    def p1():
        tr.vm(('it', i), f'buffer_load_dwordx4 v{v+1}, {srdr(s)}, s{sT} offen offset:1024{nt} lds')
    return [p0, p1]


def pre_stream(k, tr):
    s = []
    s.append(lambda: tr.wait(lambda t: t == 'c'))
    s.append(f's_mov_b32 s3, {f32hex(-1.4426950408889634)}')
    for p in range(3):
        c, t = 160 + p, 184 + p
        s += [f'v_lshlrev_b32 v{c}, 16, v{c}', f'v_mul_f32 v{t}, s3, v{c}', f'v_exp_f32 v{t}, v{t}']
    for p in range(3):
        c, t = 160 + p, 184 + p
        s += [f'v_add_f32 v{t}, 1.0, v{t}', f'v_rcp_f32 v{t}, v{t}']
    for p in range(3):
        c, t = 160 + p, 184 + p
        s += [f'v_mul_f32 v{c}, v{c}, v{t}']
        rnd1(s, c)
    for p in range(3):
        s.append(lambda p=p: tr.wait(lambda t: t == ('m', p)))
        for i in range(4):
            w = 164 + 4 * p + i
            s += [f'v_lshlrev_b32 v{184+2*i}, 16, v{w}', f'v_and_b32 v{185+2*i}, 0xffff0000, v{w}']
        for e in range(8):
            s.append(f'v_mul_f32 v{176+e}, v{160+p}, v{184+e}' if p == 0 else f'v_fmac_f32 v{176+e}, v{160+p}, v{184+e}')
    for sh in (2, 4, 8):
        for e in range(8):
            s.append(f'v_add_f32_dpp v{176+e}, v{176+e}, v{176+e} row_ror:{sh} row_mask:0xf bank_mask:0xf')
    s += [f'ds_write_b128 v163, {vr(176)}', f'ds_write_b128 v163, {vr(180)} offset:16']
    s += ['s_waitcnt lgkmcnt(0)', 's_barrier']
    for i in range(4):
        s.append(f'ds_read2_b32 v[{36+2*i}:{37+2*i}], v32 offset0:{32*i} offset1:{32*i+16}')
    s.append(f's_lshl_b32 s3, s{sCB}, 5')
    s.append(f's_add_u32 s3, s3, {WS["modp"]}')
    s.append('s_waitcnt lgkmcnt(0)')
    for a, b in ((36, 37), (38, 39), (40, 41), (42, 43), (36, 38), (40, 42), (36, 40)):
        s.append(f'v_add_f32 v{a}, v{a}, v{b}')
    for w in ('16', '32'):
        s += ['v_mov_b32 v37, v36', f'v_permlane{w}_swap_b32 v36, v37', 'v_add_f32 v36, v36, v37']
    rnd1(s, 36)
    s.append(f'v_add_f32 v36, s{sADD}, v36')
    s.append('v_mov_b32_dpp v37, v36 quad_perm:[1,0,3,2] row_mask:0xf bank_mask:0xf')
    s.append('v_cvt_pk_bf16_f32 v34, v36, v37')
    s.append(lambda: tr.vm('ms', f'buffer_store_dword v34, v33, {srdr(SWS)}, s3 offen sc1'))
    X = 36
    A, B = 46, 1
    s.append(lambda: tr.wait(lambda t: t == 'xi'))
    for i in range(5):
        s += [f'v_lshlrev_b32 v{X+2*i}, 16, v{V_N+i}', f'v_and_b32 v{X+1+2*i}, 0xffff0000, v{V_N+i}']
    s += [f'v_add_f32 v{A}, v{X}, v{X+1}', f'v_add_f32 v{B}, v{X+2}, v{X+3}']
    for i in range(4, 10, 2):
        s += [f'v_add_f32 v{A}, v{A}, v{X+i}', f'v_add_f32 v{B}, v{B}, v{X+1+i}']
    s.append(f'v_add_f32 v{A}, v{A}, v{B}')
    wavesum(s, A, 2)
    s.append(f'v_mul_f32 v{A}, {f32hex(1.0/640)}, v{A}')
    for i in range(10):
        t = 2 + (i & 1)
        s.append(f'v_sub_f32 v{t}, v{X+i}, v{A}')
        s.append(f'v_mul_f32 v{B}, v{t}, v{t}' if i == 0 else f'v_fmac_f32 v{B}, v{t}, v{t}')
    wavesum(s, B, 2)
    s.append(f'v_mul_f32 v{B}, {f32hex(1.0/640)}, v{B}')
    rnd1(s, B)
    rnd1(s, A)
    s.append(f'v_add_f32 v{B}, {f32hex(1e-5)}, v{B}')
    rnd1(s, B)
    s.append(f'v_sqrt_f32 v{B}, v{B}')
    rnd1(s, B)
    s.append(f'v_rcp_f32 v{B}, v{B}')
    for i in range(5):
        a, b = X + 2 * i, X + 1 + 2 * i
        t = 2 + (i & 1)
        s += [f'v_sub_f32 v{a}, v{a}, v{A}', f'v_sub_f32 v{b}, v{b}, v{A}', f'v_cvt_pk_bf16_f32 v{t}, v{a}, v{b}',
              f'v_lshlrev_b32 v{a}, 16, v{t}', f'v_and_b32 v{b}, 0xffff0000, v{t}',
              f'v_mul_f32 v{a}, v{a}, v{B}', f'v_mul_f32 v{b}, v{b}, v{B}', f'v_cvt_pk_bf16_f32 v{V_N+i}, v{a}, v{b}']
    return s


def side_stream(k, tr, spins, isk, scr):
    s = []
    MODB = WS['modp']
    SCR = scr * 16384
    s.append(('mark', 'ms'))
    s += ['v_and_b32 v1, 7, v0', f'v_xor_b32 v1, s{sWAVE}, v1', 'v_lshlrev_b32 v1, 4, v1', 'v_lshl_add_u32 v1, v0, 7, v1',
          f'v_add_u32 v1, {SCR}, v1',
          'v_bfe_u32 v2, v0, 2, 3', f'v_xor_b32 v2, s{sWAVE}, v2', 'v_lshlrev_b32 v2, 4, v2', 'v_lshrrev_b32 v3, 2, v0',
          'v_lshl_add_u32 v2, v3, 7, v2', 'v_and_b32 v3, 3, v0', 'v_lshl_add_u32 v2, v3, 2, v2', f'v_add_u32 v2, {SCR + 8192}, v2']
    NPX = OPT.get('npx', 32)
    pfx = [('blk', ['s_lshr_b32 s3, s2, 3', 's_lshl_b32 s3, s3, 3', f's_add_u32 s3, s3, s{sWAVE}', f's_mul_i32 s3, s3, {NPX*128}',
                    f's_add_u32 s3, s3, {2048*1024 - NPX*128*256}']),
           lambda: tr.vm('pf', f'buffer_load_dword v{PK}, v{PK+2}, {srdr(SX)}, s3 offen')]
    pfq = [('blk', [f's_mul_i32 s3, s{sPAIR}, 80', f's_mul_i32 s61, s{sWAVE}, 10', 's_add_u32 s3, s3, s61', 's_lshl_b32 s3, s3, 13',
                    f's_lshl_b32 s61, s{sHEAD}, 8', 's_add_u32 s3, s3, s61']),
           lambda: tr.vm('pf', f'buffer_load_dword v{PK+1}, v{PK+3}, {srdr(SQ)}, s3 offen')]
    PFX, PFQ = OPT.get('pfx', 7), OPT.get('pfq', 8)
    if PFX < 7:
        s += [('at', PFX)] + pfx
    if PFQ < 7:
        s += [('at', PFQ)] + pfq
    s.append(('after', 'ms', OPT.get('msw', 1)))
    s.append(lambda: tr.wait(lambda t: t == 'ms'))
    s.append(('blk', [f's_cmp_lt_u32 s{sCB}, 80', f's_cselect_b32 s3, 0, 0x1000']))
    s.append(lambda: tr.vm('at', f'buffer_atomic_add v{V_ONE}, v{V_AT}, {srdr(SD)}, s3 offen sc1'))
    s.append(('mark', 'modflag'))
    P1 = OPT.get('p1', 6)
    B1 = OPT.get('b1', 11)
    assert B1 in bar_steps()
    if 7 <= PFX < P1:
        s += [('at', PFX)] + pfx
    if 7 <= PFQ < P1:
        s += [('at', PFQ)] + pfq
    s.append(('at', P1))
    s.append(lambda: tr.vm('pl', spins.load('cnt', None, V_AT)))
    if PFX >= P1:
        s += [('at', PFX)] + pfx
    if PFQ >= P1:
        s += [('at', PFQ)] + pfq
    s.append(('at', B1 - 1))
    s.append(('late',))
    s.append(lambda: tr.wait(lambda t: t == 'pl'))
    s.append(('blk', spins.check('cnt', None, 80, V_AT, sPASS0)))
    s.append(('dl', B1 - 1))
    s.append(('ab', B1))
    s.append(f's_mov_b32 s3, {MODB}')
    s.append(lambda: tr.vm('sa', f'buffer_load_dwordx4 {vr(32)}, v{V_L16}, {srdr(SWS)}, s3 offen sc1'))
    s.append(lambda: tr.vm('sa', f'buffer_load_dwordx4 {vr(40)}, v{V_L16}, {srdr(SWS)}, s3 offen offset:1280 sc1'))
    s.append(lambda: tr.vm('sa', f'buffer_load_dword v36, v{V_L4}, {srdr(SWS)}, s3 offen offset:1024 sc1'))
    s.append(lambda: tr.vm('sa', f'buffer_load_dword v37, v{V_L4}, {srdr(SWS)}, s3 offen offset:2304 sc1'))
    s.append(('at', B1 + 4))
    s.append(lambda: tr.wait(lambda t: t == 'sa'))
    for i in range(5):
        n = V_N + i
        sa = 32 + i if i < 4 else 36
        ca = 40 + i if i < 4 else 37
        s += [f'v_lshlrev_b32 v38, 16, v{n}', f'v_and_b32 v39, 0xffff0000, v{n}',
              f'v_lshlrev_b32 v44, 16, v{ca}', f'v_and_b32 v45, 0xffff0000, v{ca}',
              'v_mul_f32 v38, v38, v44', 'v_mul_f32 v39, v39, v45', 'v_cvt_pk_bf16_f32 v46, v38, v39',
              'v_lshlrev_b32 v38, 16, v46', 'v_and_b32 v39, 0xffff0000, v46',
              f'v_lshlrev_b32 v44, 16, v{sa}', f'v_and_b32 v45, 0xffff0000, v{sa}',
              'v_add_f32 v38, v38, v44', 'v_add_f32 v39, v39, v45', f'v_cvt_pk_bf16_f32 v{n}, v38, v39']
        if i == 3:
            s.append(f'ds_write_b128 v1, {vr(V_N)}')
    s.append(f'ds_write_b32 v2, v{V_N+4}')
    s.append(('mark', 'hw'))
    B2 = OPT.get('b2', 23)
    assert B2 in bar_steps() and B2 + 4 <= 31
    s.append(('dl', B2 - 1))
    s += [('blk', [f's_lshl_b32 s3, s{sWAVE}, 10', f's_add_u32 s3, s3, {SCR}', f'v_add_u32 v1, s3, v{V_L16}']),
          ('blk', [f's_lshl_b32 s3, s{sWAVE}, 8', f's_add_u32 s3, s3, {SCR + 8192}', f'v_add_u32 v2, s3, v{V_L16}']),
          'v_lshrrev_b32 v39, 3, v0', 'v_and_b32 v44, 7, v0', 'v_xor_b32 v3, v44, v39', 'v_lshlrev_b32 v3, 4, v3',
          'v_lshl_add_u32 v3, v39, 8, v3',
          ('blk', [f's_lshl_b32 s3, s{sWAVE}, 11', 'v_add_u32 v3, s3, v3']),
          ('blk', [f's_lshl_b32 s3, s{sWAVE}, 1', 'v_add_u32 v39, s3, v39']),
          'v_and_b32 v45, 7, v39', 'v_xor_b32 v38, v44, v45', 'v_lshlrev_b32 v38, 4, v38', 'v_lshl_add_u32 v38, v39, 8, v38',
          'v_add_u32 v38, 0x4000, v38', 'v_lshrrev_b32 v45, 4, v0', 'v_lshl_or_b32 v38, v45, 28, v38']
    s.append(('ab', B2))
    s += [f'ds_read_b128 {vr(32)}, v1', f'ds_read_b128 {vr(40)}, v2']
    s.append(('dl', B2))
    s.append(('at', B2 + 1))
    s.append(lambda: tr.vm('hs', f'buffer_store_dwordx4 {vr(32)}, v3, {srdr(SWS)}, s{sH1} offen sc1'))
    s.append(lambda: tr.vm('hs', f'buffer_store_dwordx4 {vr(40)}, v38, {srdr(SWS)}, s{sH1} offen sc1'))
    s.append(('mark', 'hs'))
    B3 = OPT.get('b3', 31)
    assert B3 in bar_steps()
    s.append(('at', B3 - 1))
    s.append(('late',))
    s.append(lambda: tr.wait(lambda t: t == 'hs'))
    s.append(('dl', B3 - 1))
    s.append(('ab', B3))
    s.append('s_lshr_b32 s3, s2, 4')
    s.append('s_lshl_b32 s3, s3, 8')
    s.append(f's_and_b32 s{sADD}, s2, 15')
    s.append(f's_lshl_b32 s{sADD}, s{sADD}, 2')
    s.append(f's_add_u32 s3, s3, s{sADD}')
    s.append(f's_add_u32 s3, s3, {FLG}')
    s.append(lambda: tr.vm('at', f'buffer_store_dword v{V_ONE}, v{V_AT}, {srdr(SWS)}, s3 offen sc1'))
    for db in range(8):
        s.append(f'v_xor_b32 v{V_QR+db}, {db*32}, v47')
    P2 = OPT.get('p2', 40)
    s.append(('at', P2))
    s.append(f's_lshl_b32 s{sADD}, s{sBLK}, 8')
    s.append(f's_add_u32 s{sADD}, s{sADD}, {FLG}')
    s.append(lambda: tr.vm('pl', spins.load(0xffff, f's{sADD}', V_PL)))
    s.append(('at', 46))
    s.append(('late',))
    s.append(lambda: tr.wait(lambda t: t == 'pl'))
    s.append(('blk', spins.check(0xffff, f's{sADD}', 1, V_PL, sPASS)))
    s.append(('dl', 46))
    s.append(('ab', 47))
    s.append(f's_lshl_b32 s{sADD}, s{sHEAD}, 8')
    s.append(f's_add_u32 s{sADD}, s{sADD}, {FLG + 4096}')
    s.append(f's_lshl_b32 s{sHROW}, s{sPAIR}, 2')
    s.append(f's_add_u32 s{sHROW}, s{sHROW}, s{sADD}')
    s.append(f'v_mov_b32 v{V_N}, 2')
    for q in range(8):
        s.append(('at', 49 + q))
        s += hload(k, tr, q)
        if q == 1:
            s.append(('late',))
            s.append(lambda: tr.wait(lambda t: t == ('st', 1)))
            s.append(('dl', 50))
            s.append(('ab', 51))
            s.append(lambda: tr.vm('at', f'buffer_store_dword v{V_ONE}, v{V_AT}, {srdr(SWS)}, s{sHROW} offen sc1'))
    s.append(('dl', 63))
    return s


def inv_blk(k, tr):
    sk, jn = k.newlabel('noinv'), k.newlabel('invj')
    return [('blk', [f's_cmp_lg_u32 s{sWAVE}, 0', f's_cbranch_scc1 {sk}', 'buffer_inv sc1', f's_branch {jn}', sk + ':',
                     f'buffer_load_dword v{V_POLL}, v{V_AT}, {srdr(SD)}, 0 offen', jn + ':']),
            lambda: tr.issued.append('inv')]


def hload(k, tr, q):
    out = []
    for qb in range(2):
        r = HR + (q % 8) * 8 + qb * 4

        def f(r=r, qb=qb):
            k(f's_add_u32 s61, s{sH0}, {OOB if OPT.get("noh") else qb*20480 + q*1024}')
            tr.vm(('h', q), f'buffer_load_dwordx4 {vr(r)}, v{V_L16}, {srdr(SWS)}, s61 offen{"" if OPT.get("plainh") else " sc1"}')
        out.append(f)
    return out


class Side:
    def __init__(self, k, lst):
        self.k = k
        self.l = lst
        self.step = -1
        self.bar = -1
        self.slot = 0
        self.marks = {}

    def pump(self, n):
        l = self.l
        while l and n > 0:
            x = l[0]
            if isinstance(x, tuple):
                if x[0] == 'at':
                    if self.step < x[1]:
                        return
                elif x[0] == 'ab':
                    if self.bar < x[1]:
                        return
                elif x[0] == 'late':
                    if self.slot < 5:
                        return
                elif x[0] == 'mark':
                    self.marks[x[1]] = self.step
                elif x[0] == 'after':
                    if self.step < self.marks[x[1]] + x[2]:
                        return
                elif x[0] == 'dl':
                    assert self.step <= x[1], ('deadline', x, self.step)
                elif x[0] == 'blk':
                    for t in x[1]:
                        self.k(t)
                    n -= 2
                l.pop(0)
                continue
            l.pop(0)
            if callable(x):
                x()
            else:
                self.k(x)
            n -= 1

    def check_deadline(self):
        for x in self.l:
            if isinstance(x, tuple) and x[0] == 'dl':
                assert self.step < x[1] + 1, ('deadline miss', x, self.step)
                return


def kv_pack(isk, f):
    if isk:
        a0, a1 = ACC + f * 8, ACC + f * 8 + 4
    else:
        u, nb = f >> 1, f & 1
        a0, a1 = ACC + (4 * u + nb) * 4, ACC + (4 * u + 2 + nb) * 4
    t = PK + 4 * f
    return [f'v_cvt_pk_bf16_f32 v{t}, v{a0}, v{a0+1}', f'v_cvt_pk_bf16_f32 v{t+1}, v{a0+2}, v{a0+3}',
            f'v_cvt_pk_bf16_f32 v{t+2}, v{a1}, v{a1+1}', f'v_cvt_pk_bf16_f32 v{t+3}, v{a1+2}, v{a1+3}']


def kv_store(k, tr, isk, st, f):
    off = st * 4 * 65536 + (f * 4096 if isk else (f >> 1) * 8192 + (f & 1) * 1024)
    if OPT.get('nost'):
        off = OOB
    k(f's_add_u32 s{sT2}, s{sKVS}, {off}')
    tr.vm(('st', st), f'buffer_store_dwordx4 {vr(PK+4*f)}, v{V_L16}, {srdr(SWS)}, s{sT2} offen {OPT.get("stm", "sc1").replace("+", " ")}')


def qreads(q):
    S = q // 2
    out = []
    for db in range(8):
        for t in range(2):
            r = WQ[q & 1] + 4 * db + 2 * t
            out.append(f'ds_read_b64_tr_b16 v[{r}:{r+1}], v{V_QR+db} offset:{(S % 4)*16384 + t*2048 + (q & 1)*1024}')
    return out


def kv_main(k, tr, spins, it, slot, avail, isk, scr):
    side = Side(k, side_stream(k, tr, spins, isk, scr))

    def reads(s):
        S = s // 2
        sl = slot[it.index(('x', S))]
        out = []
        if s < 16:
            sw = slot[it.index(('w', S))]
            for nb in range(2):
                for t in range(2):
                    r = wreg(s, nb) + 2 * t
                    out.append(f'ds_read_b64_tr_b16 v[{r}:{r+1}], v{V_WR+2*(sw//4)+nb} offset:{(sw % 4)*16384 + t*2048 + (s & 1)*1024}')
        xo = [f'ds_read_b128 {vr(XF[s & 1]+4*rb)}, v{V_XR+2*(sl//4)+(s & 1)} offset:{(sl % 4)*16384 + rb*2048}' for rb in range(4)]
        return xo[:1] + out + xo[1:]

    bars = bar_steps()

    def stage_items(S):
        if S < 32:
            return [it.index(('x', S))] + ([it.index(('w', S))] if S < 8 else [])
        return [40 + q for q in range(5)]

    def wait_stage(Ss):
        idx = sum((stage_items(S) for S in Ss), [])
        if OPT.get('skipdma'):
            idx = [i for i in idx if ('it', i) in tr.issued]
            if not idx:
                return
        for i in idx:
            assert tr.issued.count(('it', i)) == 2, ('item not issued', i, Ss)
        tr.wait(lambda t: t[0] == 'it' and t[1] in idx)

    pend = []
    for i in range(NPRE, len(it)):
        pend += [(avail[i], p) for p in dma_item(k, tr, it, slot, i)]
    wait_stage([0])
    k('s_barrier')
    stamp(k, 'p1')
    for r in reads(0):
        k(r)
    side.step = 0
    for s in range(64):
        st, ks, S = s // 16, s % 16, s // 2
        side.step = s
        side.check_deadline()
        stamp(k, f's{s}')
        ms = []
        for rb in range(4):
            for nb in range(2):
                acc = ACC + (rb * 2 + nb) * 4
                x, w = vr(XF[s & 1] + 4 * rb), vr(wreg(ks, nb))
                a, b = (w, x) if isk else (x, w)
                ms.append(f'v_mfma_f32_16x16x32_bf16 {vr(acc)}, {a}, {b}, {"0" if ks == 0 else vr(acc)}')
        rs = reads(s + 1) if s + 1 < 64 else qreads(0)
        k('s_waitcnt lgkmcnt(0)')
        if s in bars:
            nb_ = min([x for x in bars if x > s] + [65])
            wait_stage(range(S + 1, (nb_ - 1) // 2 + 1))
            k('s_barrier')
            side.bar = s
        nd = 0
        cap = 4 if s < 16 else (4 if s == 63 else 2)
        for i in range(8):
            side.slot = i
            if ks == 0 and st > 0:
                fl = ([i // 2] if i % 2 == 0 else []) if isk else ([i // 2, i // 2 + 1] if i % 4 == 0 else [])
                for f in fl:
                    for x in kv_pack(isk, f):
                        k(x)
            for _ in range(2 if len(rs) <= 2 * (8 - i) else 3):
                if rs:
                    k(rs.pop(0))
            k(ms[i])
            if pend and pend[0][0] <= side.bar and nd < cap and i % 2 == 1:
                pend.pop(0)[1]()
                nd += 1
            elif st > 0 and ks % 4 == 1 and i == 6:
                kv_store(k, tr, isk, st - 1, ks // 4)
            elif not (ks == 0 and st > 0):
                side.pump(OPT['rate'])
        assert not rs, (s, rs)
    assert not pend
    side.step = 64
    side.pump(1000)
    assert not side.l, side.l
    print('marks', side.marks)


O0, S0, Q0, P0, R0, NM, T0, ONES, LA = 192, 160, 128, 112, 80, 72, 56, 40, 44
V_KADDR, V_VADDR, V_MDB, V_MD, V_NEG, V_TS, V_L, V_ST = 15, 16, 17, 18, 19, 24, 25, 27
STASH = 131072
sBIAS, sCLAMP, sJ, sFIRST, sGB, sLB = 48, 49, 50, 51, 52, 53
sTN = 59
sJJ, sGJ, sMLO, sFIN, sSWI = 7, 8, 10, 13, 14
sCTX = 17


SO = 28
sFLG, sPOL, sCX0, sCX1, sPB, sWG, sWL, sWG2, sWL2, sWL3 = 24, 25, 26, 27, 32, 33, 34, 35, 44, 45
V_WO, V_TR, V_F1, V_F4, V_EX, V_SA = 4, 9, 11, 12, 13, 14
sPF, V_PF = 46, 54
sPS, V_PC = 47, 26
CXR = [128 + 8 * i for i in range(8)]
OACR = [192 + 4 * n for n in range(16)] + [112 + 4 * n for n in range(4)]
WFR = [[32 + 4 * n for n in range(10)], [72 + 4 * n for n in range(10)]]
SLOTB = [122880, 81920, 0, 40960]
HOFF = [0, 1, 16, 17]
PSTRIDE = 128 * 20480


def wo_voff(d, sp, c, t=(1, 2)):
    a, b = t
    return [f'v_add_u32 v{a}, s{sp}, v0'] + ([f'v_add_u32 v{a}, {c*64}, v{a}'] if c else []) + [
        f'v_mul_u32_u24 v{b}, 52429, v{a}', f'v_lshrrev_b32 v{b}, 20, v{b}', f'v_mul_u32_u24 v{d}, 20, v{b}',
        f'v_sub_u32 v{a}, v{a}, v{d}', f'v_bfe_u32 v{d}, v{b}, 2, 1', f'v_xor_b32 v{a}, v{a}, v{d}',
        f'v_mul_u32_u24 v{b}, 1280, v{b}', f'v_lshl_add_u32 v{d}, v{a}, 4, v{b}']


def o_setup():
    s = []
    s += [f's_mov_b32 s{SO}, s64', f's_mov_b32 s{SO+1}, s65', f's_mov_b32 s{SO+2}, {SIZE["wo"]}', f's_mov_b32 s{SO+3}, 0x00020000']
    s += [('blk', [f's_lshl_b32 s3, s{sBLK}, 2', f's_add_u32 s3, s3, s{sRQ}', 's_lshl_b32 s3, s3, 7',
                   f's_and_b32 s{sFLG}, s{sHEAD}, 14', f's_lshl_b32 s{sFLG}, s{sFLG}, 3', f's_add_u32 s{sFLG}, s{sFLG}, s3']),
          ('blk', [f's_and_b32 s3, s{sHEAD}, 1', 's_lshl_b32 s3, s3, 2', f's_add_u32 s{sFLG}, s{sFLG}, s3',
                   f's_lshr_b32 s3, s{sHEAD}, 4', 's_lshl_b32 s3, s3, 3', f's_add_u32 s{sFLG}, s{sFLG}, s3',
                   f's_add_u32 s{sFLG}, s{sFLG}, {FLG2}'])]
    s += [('blk', ['s_lshr_b32 s3, s2, 5', f's_xor_b32 s{sPOL}, s{sG}, 1', f's_lshl_b32 s{sPOL}, s{sPOL}, 3',
                   f's_add_u32 s3, s3, s{sPOL}', 's_lshl_b32 s3, s3, 2', f's_add_u32 s3, s3, s{sRQ}',
                   f's_lshl_b32 s{sCX0}, s3, 18', f's_mul_i32 s{sPB}, s3, {2*20480}', f's_lshl_b32 s{sPOL}, s3, 7']),
          ('blk', ['s_and_b32 s3, s2, 7', 's_lshl_b32 s61, s3, 4', f's_add_u32 s{sPOL}, s{sPOL}, s61',
                   f's_add_u32 s{sPOL}, s{sPOL}, {FLG2}',
                   's_lshl_b32 s61, s3, 13', f's_add_u32 s{sCX0}, s{sCX0}, s61', f's_add_u32 s{sCX0}, s{sCX0}, {WS["ctx"]}',
                   f's_add_u32 s{sCX1}, s{sCX0}, 0x20000']),
          ('blk', [f's_mul_i32 s61, s3, {PSTRIDE}', f's_add_u32 s{sPB}, s{sPB}, s61', f's_add_u32 s{sPB}, s{sPB}, {WS["part"]}',
                   f's_mul_i32 s{sWG2}, s3, {2*128*1280}', 's_bfe_u32 s3, s2, 0x20003', 's_mul_i32 s61, s3, 5120',
                   f's_add_u32 s{sPB}, s{sPB}, s61', 's_mul_i32 s61, s3, 320', f's_add_u32 s{sWG2}, s{sWG2}, s61']),
          ('blk', [f's_xor_b32 s3, s{sG}, 1', f's_mul_i32 s3, s3, {128*1280}', f's_add_u32 s{sWG}, s{sWG2}, s3',
                   f's_add_u32 s{sWG2}, s{sWG2}, {16*128*1280}',
                   f's_mul_i32 s{sWL}, s{sG}, 40960', f's_mul_i32 s3, s{sRQ}, 10240', f's_add_u32 s{sWL}, s{sWL}, s3',
                   f's_add_u32 s{sWL}, s{sWL}, 81920', f's_mul_i32 s{sWL3}, s{sRQ}, 640'])]
    for c in range(5):
        s += wo_voff(V_WO + c, sWL3, c)
    s += [('blk', [f's_lshl_b32 s3, s{sRQ}, 14', f's_add_u32 s{sWL2}, s3, 0x4000', f's_cmp_eq_u32 s{sRQ}, 0',
                   f's_cselect_b32 s{sWL2}, 0, s{sWL2}', f's_lshl_b32 s{sWL3}, s{sRQ}, 12', f's_add_u32 s{sWL3}, s{sWL3}, 0x4000']),
          f'v_add_u32 v{V_EX}, s{sWL2}, v{V_L16}', f'v_add_u32 v{V_SA}, s{sWL3}, v{V_L16}']
    s += ['v_lshrrev_b32 v1, 2, v0', 'v_mul_u32_u24 v1, 320, v1', 'v_and_b32 v2, 3, v0', 'v_bfe_u32 v3, v0, 4, 1',
          'v_xor_b32 v3, v3, v2', 'v_lshl_add_u32 v1, v3, 4, v1', 'v_and_b32 v2, 1, v0',
          f'v_lshl_add_u32 v{V_TR}, v2, 3, v1', f'v_add_u32 v{V_TR}, {SLOTB[0]}, v{V_TR}', f'v_xor_b32 v{V_TR+1}, 8, v{V_TR}']
    s += [('blk', ['s_lshr_b32 s3, s2, 3', 's_lshl_b32 s3, s3, 3', f's_add_u32 s3, s3, s{sWAVE}', 's_and_b32 s61, s3, 127',
                   f's_mul_i32 s{sPF}, s61, 2560', 's_lshr_b32 s3, s3, 7', f's_mul_i32 s3, s3, {16*128*1280}',
                   f's_add_u32 s{sPF}, s{sPF}, s3', 's_and_b32 s3, s2, 7', f's_mul_i32 s3, s3, {2*128*1280}',
                   f's_add_u32 s{sPF}, s{sPF}, s3'])]
    s += [f's_xor_b32 s{sPS}, s{sG}, 1', f'v_lshlrev_b32 v{V_PC}, 6, v0']
    s += [f'v_mov_b32 v1, {OOB}', 'v_lshlrev_b32 v2, 6, v0', ('blk', ['v_cmp_gt_u32 vcc, 40, v0', f'v_cndmask_b32 v{V_PF}, v1, v2, vcc'])]
    s += [('blk', ['v_cmp_eq_u32 vcc, 0, v0', f'v_cndmask_b32 v{V_F1}, v1, v0, vcc']),
          ('blk', ['v_cmp_gt_u32 vcc, 4, v0', f'v_cndmask_b32 v{V_F4}, v1, v{V_L4}, vcc'])]
    return s


def Or(db, qb): return O0 + (db * 2 + qb) * 4
def Sr(kvb, qb): return S0 + (kvb * 2 + qb) * 4
def Qr(ks, qb): return Q0 + (ks * 2 + qb) * 4
def Pr(u, qb): return P0 + (u * 2 + qb) * 4


def kv_pieces(k, tr, tile, isv, par):
    out = []
    for i in range(4):
        def p(i=i):
            if i == 0:
                k(f's_add_u32 m0, s{sLB}, {par*65536 + isv*16384}')
                k(f's_add_u32 s{sT}, s{sGB}, {tile*32768 + isv*16384}')
            tr.vm('kv', f'buffer_load_dwordx4 v{V_L16}, {srdr(SWS)}, s{sT} offen offset:{i*1024}{KVSC()} lds')
        out.append(p)
    return out


NOS = 40


def qproj(k, tr, spins, isk):
    side = []
    side += [f's_lshl_b32 s{sGB}, s{sHEAD}, 20', f's_lshl_b32 s3, s{sRQ}, 12', f's_add_u32 s{sGB}, s{sGB}, s3',
             f's_lshl_b32 s{sLB}, s{sG}, 15', f's_add_u32 s{sLB}, s{sLB}, s3',
             f's_lshl_b32 s{sJJ}, s{sPAIR}, 1', f's_add_u32 s{sJJ}, s{sJJ}, 2', f's_sub_u32 s{sGJ}, s{sG}, s{sJJ}',
             ('blk', [f's_cmp_eq_u32 s{sG}, 1', f's_cselect_b32 s{sFIN}, s{sJJ}, 99']),
             f's_sub_u32 s{sSWI}, s{sFIN}, 1', f's_sub_u32 s{sMLO}, s{sFIN}, 2',
             f's_mov_b32 s{sBIAS}, {f32hex(BIAS)}', f's_mov_b32 s{sCLAMP}, {f32hex(-1e20)}',
             f's_mov_b32 s{sJ}, 0', f's_mov_b32 s{sFIRST}, 1', f's_mov_b32 s{sTN}, 1']
    side += [f's_lshl_b32 s3, s{sG}, 15', f'v_add_u32 v{V_KADDR}, s3, v{V_L16}', f'v_mov_b32 v{V_VADDR}, v{V_KADDR}',
             'v_and_b32 v1, 15, v0', 'v_lshrrev_b32 v2, 4, v0', 'v_lshlrev_b32 v2, 2, v2', 'v_sub_u32 v1, v1, v2',
             ('blk', [f's_lshl_b32 s3, s{sRQ}, 5', f'v_add_u32 v{V_MDB}, s3, v1']), f'v_mov_b32 v{V_NEG}, {f32hex(-1e30)}',
             ('blk', [f's_lshl_b32 s3, s{sRQ}, 13', f's_add_u32 s3, s3, {STASH}', f'v_add_u32 v{V_ST}, s3, v{V_L16}'])]
    side += [f'v_mov_b32 v{ONES+r}, 0x3f803f80' for r in range(4)]
    side.append(('at', 1))
    side += [f'v_mov_b32 v{LA+r}, 0' for r in range(8)]
    side.append(('at', 4))
    side.append(lambda: tr.vm('pl', spins.load(0xff, f's{sADD}', V_PK)))
    oset = o_setup()
    side += oset[:NOS]
    side.append(('at', 8))
    side.append(('late',))
    side.append(lambda: tr.wait(lambda t: t == 'pl'))
    side.append(('blk', spins.check(0xff, f's{sADD}', 1, V_PK, sPASS0)))
    side.append(('dl', 8))
    side.append(('ab', 9))
    side.append(lambda: tr.vm('at', f'buffer_store_dword v{V_N}, v{V_AT}, {srdr(SWS)}, s{sHROW} offen sc1'))
    side += kv_pieces(k, tr, 0, 0, 0) + kv_pieces(k, tr, 0, 1, 0)
    side += oset[NOS:]
    side.append(('ab', 13))
    side += kv_pieces(k, tr, 1, 0, 1)
    side.append(('dl', 16))
    side.append(('at', 17))
    side.append(lambda: tr.vm('pl', spins.load(0xff, f's{sADD}', V_PK)))
    side.append(f's_mov_b32 s{sT2}, {f32hex(QSCALE)}')
    side = Side(k, side)
    for q in range(20):
        side.step = q
        side.check_deadline()
        stamp(k, f'q{q}')
        ms = []
        for db in range(8):
            for qb in range(2):
                acc = QA + (db * 2 + qb) * 4
                ms.append(f'v_mfma_f32_16x16x32_bf16 {vr(acc)}, {vr(WQ[q & 1]+4*db)}, {vr(HR+(q % 8)*8+qb*4)}, {"0" if q == 0 else vr(acc)}')
        rs = qreads(q + 1) if q + 1 < 20 else []
        tr.wait(lambda t: t == ('h', q))
        k('s_waitcnt lgkmcnt(0)')
        if q in (7, 15):
            for db in range(8):
                k(f'v_add_u32 v{V_QR+db}, 0x10000, v{V_QR+db}')
        if q in (9, 13):
            if q == 9:
                tr.wait(lambda t: t[0] == 'it' or t == ('st', 3))
            k('s_barrier')
            side.bar = q
        extra = []
        if q >= 1 and q + 7 < 20:
            extra += hload(k, tr, q + 7)
        if q >= 13:
            extra += [f'v_mov_b32 v{HR+((q-1) % 8)*8+r}, 0' for r in range(8)]
        for i in range(16):
            side.slot = i // 2
            if q == 0 and i < 8 and i % 2 == 0:
                for x in kv_pack(isk, i // 2):
                    k(x)
            for _ in range(2 if i < 4 else 1):
                if rs:
                    k(rs.pop(0))
            k(ms[i])
            if q < 4 and i == 10:
                kv_store(k, tr, isk, 3, q)
            elif extra:
                x = extra.pop(0)
                x() if callable(x) else k(x)
            else:
                side.pump(1)
            if q == 19 and i >= 6 and i % 4 == 2:
                qpack(k, (i - 6) // 4)
        assert not rs and not extra
    side.step = 20
    side.pump(1000)
    assert not side.l
    qpack(k, 3)
    for r in range(8):
        k(f'v_mov_b32 v{HR+3*8+r}, 0')
    for r in range(8):
        k(f'v_mov_b32 v{NM+r}, 0')


def qpack(k, ks):
    for qb in range(2):
        a0, a1 = QA + (4 * ks + qb) * 4, QA + (4 * ks + 2 + qb) * 4
        for a in (a0, a1):
            for r in range(4):
                k(f'v_mul_f32 v{a+r}, s{sT2}, v{a+r}')
        q = Qr(ks, qb)
        k(f'v_cvt_pk_bf16_f32 v{q}, v{a0}, v{a0+1}')
        k(f'v_cvt_pk_bf16_f32 v{q+1}, v{a0+2}, v{a0+3}')
        k(f'v_cvt_pk_bf16_f32 v{q+2}, v{a1}, v{a1+1}')
        k(f'v_cvt_pk_bf16_f32 v{q+3}, v{a1+2}, v{a1+3}')


def loop_dma_pieces():
    pre = [f's_lshl_b32 s56, s{sTN}, 15',
           f's_add_u32 s56, s56, s{sGB}',
           's_add_u32 s56, s56, 16384',
           f's_and_b32 s55, s{sJ}, 1',
           's_lshl_b32 s55, s55, 16',
           f's_add_u32 s55, s55, s{sLB}',
           's_xor_b32 s57, s55, 0x14000',
           f's_add_u32 s58, s{sJ}, 2',
           's_lshl_b32 s54, s58, 1',
           f's_add_u32 s54, s54, s{sGJ}',
           f's_cmp_lt_u32 s58, s{sJJ}',
           f's_cselect_b32 s{sTN}, s58, s54',
           f's_lshl_b32 s54, s{sTN}, 15',
           f's_add_u32 s54, s54, s{sGB}',
           's_cmp_gt_u32 s58, 16',
           f's_cselect_b32 s{SK2+2}, 0, s{SWS+2}']
    if OPT.get('nodma'):
        pre.append(f's_mov_b32 s{SK2+2}, 0')
    if OPT.get('hotdma'):
        pre += [f's_mov_b32 s54, s{sGB}', f's_mov_b32 s56, s{sGB}']
    ps = []
    for i in range(4):
        ps.append((['s_mov_b32 m0, s57'] if i == 0 else []) +
                  [f'buffer_load_dwordx4 v{V_L16}, {srdr(SK2 if OPT.get("nodma") else SWS)}, s56 offen offset:{i*1024}{KVSC()} lds'])
    for i in range(4):
        ps.append((['s_mov_b32 m0, s55'] if i == 0 else []) +
                  [f'buffer_load_dwordx4 v{V_L16}, {srdr(SK2)}, s54 offen offset:{i*1024}{KVSC()} lds'])
    return pre, ps


def frag_list(pv, qk):
    L = []
    if pv:
        for u in range(2):
            for db in range(8):
                ms = [(Or(db, qb), Pr(u, qb), Or(db, qb)) for qb in range(2)]
                if db in (2, 5):
                    qb = 0 if db == 2 else 1
                    ms.append((LA + 4 * qb, Pr(u, qb), LA + 4 * qb))
                L.append((V_VADDR, 16384 + (u * 8 + db) * 1024, ms))
    if qk:
        for ks in range(4):
            for kvb in range(4):
                ms = [(Sr(kvb, qb), Qr(ks, qb), (NM + 4 * qb) if ks == 0 else Sr(kvb, qb)) for qb in range(2)]
                L.append((V_KADDR, (kvb * 4 + ks) * 1024, ms))
    return L


PF = 7


def rd(L, i):
    a, off, _ = L[i]
    return f'ds_read_b128 {vr(R0 + (i % 8) * 4)}, v{a} offset:{off}'


def prefetch(k, L):
    for i in range(min(PF, len(L))):
        k(rd(L, i))


def mfma_phase(k, L, side=None):
    n = len(L)
    for i in range(n):
        if side and i >= 2:
            for x in side.pop(0):
                k(x)
        k(f's_waitcnt lgkmcnt({min(n, i + PF) - (i + 1)})')
        r = R0 + (i % 8) * 4
        ms = L[i][2]
        d, b, c = ms[0]
        k(f'v_mfma_f32_16x16x32_bf16 {vr(d)}, {vr(r)}, {vr(b)}, {vr(c)}')
        if i + PF < n:
            k(rd(L, i + PF))
        d, b, c = ms[1]
        k(f'v_mfma_f32_16x16x32_bf16 {vr(d)}, {vr(r)}, {vr(b)}, {vr(c)}')
        if len(ms) > 2:
            d, b, c = ms[2]
            k(f'v_mfma_f32_16x16x32_bf16 {vr(d)}, {vr(ONES)}, {vr(b)}, {vr(c)}')


def ctx_base(k, blk_expr):
    k(f's_lshl_b32 s54, {blk_expr}, 2')
    k(f's_add_u32 s54, s54, s{sRQ}')
    k('s_lshl_b32 s54, s54, 18')
    k(f's_lshl_b32 s55, s{sHEAD}, 12')
    k('s_add_u32 s54, s54, s55')
    k(f's_add_u32 s54, s54, {WS["ctx"]}')
    k('s_add_u32 s55, s54, 0x20000')


def finalize_b(k):
    sk = k.newlabel('nofin')
    k(f's_cmp_lg_u32 s{sJ}, s{sFIN}')
    k(f's_cbranch_scc1 {sk}')
    ctx_base(k, f's{sPAIR}')
    for qb in range(2):
        k(f'v_rcp_f32 v{T0+qb}, v{LA+4*qb}')
    for r in range(8):
        k(f'v_mov_b32 v{LA+r}, 0')
    n = 0
    for ks in range(4):
        for qb in range(2):
            a0, a1 = Or(2 * ks, qb), Or(2 * ks + 1, qb)
            t = R0 + n * 4
            n += 1
            for a in (a0, a1):
                for r in range(4):
                    k(f'v_mul_f32 v{a+r}, v{a+r}, v{T0+qb}')
            k(f'v_cvt_pk_bf16_f32 v{t}, v{a0}, v{a0+1}')
            k(f'v_cvt_pk_bf16_f32 v{t+1}, v{a0+2}, v{a0+3}')
            k(f'v_cvt_pk_bf16_f32 v{t+2}, v{a1}, v{a1+1}')
            k(f'v_cvt_pk_bf16_f32 v{t+3}, v{a1+2}, v{a1+3}')
            k(f'buffer_store_dwordx4 {vr(t)}, v{V_L16}, {srdr(SWS)}, s{54+qb} offen offset:{ks*1024} sc1')
            for a in (a0, a1):
                for r in range(4):
                    k(f'v_mov_b32 v{a+r}, 0')
    k.label(sk)


def softmax(k, last, spins):
    lab, rare, done = k.newlabel('sm'), k.newlabel('rare'), k.newlabel('smd')
    finalize_b(k)
    pieces = []
    if last:
        k(spins.load(0xf, f's{sPOL}', V_F4))
    if not last and OPT.get('pfj', 13) < 16:
        sk = k.newlabel('nopf')
        k(f's_cmp_lg_u32 s{sJ}, {OPT.get("pfj", 13)}')
        k(f's_cbranch_scc1 {sk}')
        k(f'buffer_load_dword v53, v{V_PF}, {srdr(SO)}, s{sPF} offen')
        k.label(sk)
    if not last:
        pre, pieces = loop_dma_pieces()
        for x in pre:
            k(x)
    else:
        k(f's_add_u32 s54, s{sWG}, {16*1280}')
        for i in range(10):
            pieces.append([f's_add_u32 m0, s{sWL}, {i*1024}',
                           f'buffer_load_dwordx4 v{V_WO + i % 5}, {srdr(SO)}, s{sWG if i < 5 else 54} offen lds'])
        pieces = [pieces[0] + pieces[1]] + pieces[2:5] + [pieces[5] + pieces[6]] + pieces[7:]

    def piece():
        if pieces:
            for x in pieces.pop(0):
                k(x)
    nm = k.newlabel('nomask')
    if last:
        k(f's_lshl_b32 s3, s{sG}, 6')
    else:
        k(f's_sub_u32 s3, s{sJ}, s{sMLO}')
        k('s_cmp_ge_u32 s3, 2')
        k(f's_cbranch_scc1 {nm}')
        k('s_lshl_b32 s3, s3, 6')
    k(f'v_subrev_u32 v{V_MD}, s3, v{V_MDB}')
    for kvb in range(4):
        for qb in range(2):
            for r in range(4):
                k(f'v_cmp_le_i32 s[{94+2*r}:{95+2*r}], {16*kvb + r - 16*qb}, v{V_MD}')
            for r in range(4):
                s = Sr(kvb, qb) + r
                k(f'v_cndmask_b32 v{s}, v{V_NEG}, v{s}, s[{94+2*r}:{95+2*r}]')
    if not last:
        k.label(nm)
    k(f's_cmp_lg_u32 s{sFIRST}, 0')
    k(f's_cbranch_scc1 {rare}')
    k.label(lab)
    n = 0
    for u in range(2):
        for qb in range(2):
            t = T0 + (n & 1) * 8
            s0, s1 = Sr(2 * u, qb), Sr(2 * u + 1, qb)
            for e in range(8):
                s = (s0 + e) if e < 4 else (s1 + e - 4)
                if e in (0, 5):
                    piece()
                k(f'v_exp_f32 v{t+e}, v{s}')
            p = Pr(u, qb)
            for e in range(0, 8, 2):
                k(f'v_cvt_pk_bf16_f32 v{p+e//2}, v{t+e}, v{t+e+1}')
            if n == 0:
                k(f'v_or3_b32 v{V_TS}, v{p}, v{p+1}, v{p+2}')
                k(f'v_or_b32 v{V_TS}, v{V_TS}, v{p+3}')
            else:
                k(f'v_or3_b32 v{V_TS}, v{V_TS}, v{p}, v{p+1}')
                k(f'v_or3_b32 v{V_TS}, v{V_TS}, v{p+2}, v{p+3}')
            n += 1
    k(f'v_and_b32 v{V_TS}, 0x40004000, v{V_TS}')
    k(f'v_cmp_ne_u32 vcc, 0, v{V_TS}')
    k(f's_cbranch_vccz {done}')
    k(f's_cmp_eq_u32 s{sFIRST}, 2')
    k(f's_cbranch_scc1 {done}')
    k.label(rare)
    for qb in range(2):
        m = T0 + qb
        vals = [Sr(kvb, qb) + r for kvb in range(4) for r in range(4)]
        k(f'v_max3_f32 v{m}, v{vals[0]}, v{vals[1]}, v{vals[2]}')
        for i in range(3, 15, 2):
            k(f'v_max3_f32 v{m}, v{m}, v{vals[i]}, v{vals[i+1]}')
        k(f'v_max_f32 v{m}, v{m}, v{vals[15]}')
    for sw in ('v_permlane32_swap_b32', 'v_permlane16_swap_b32'):
        for qb in range(2):
            k(f'v_mov_b32 v{T0+2+qb}, v{T0+qb}')
        for qb in range(2):
            k(f'{sw} v{T0+qb}, v{T0+2+qb}')
        for qb in range(2):
            k(f'v_max_f32 v{T0+qb}, v{T0+qb}, v{T0+2+qb}')
    for qb in range(2):
        k(f'v_add_f32 v{T0+qb}, s{sBIAS}, v{T0+qb}')
    nf, jn = k.newlabel('nf'), k.newlabel('jn')
    k(f's_cmp_lg_u32 s{sFIRST}, 0')
    k(f's_cbranch_scc0 {nf}')
    for qb in range(2):
        k(f'v_max_f32 v{T0+qb}, s{sCLAMP}, v{T0+qb}')
    k(f's_branch {jn}')
    k.label(nf)
    for qb in range(2):
        k(f'v_max_f32 v{T0+qb}, 0, v{T0+qb}')
        k(f'v_exp_f32 v{T0+2+qb}, -v{T0+qb}')
    for qb in range(2):
        for r in range(4):
            k(f'v_mul_f32 v{LA+4*qb+r}, v{LA+4*qb+r}, v{T0+2+qb}')
        for db in range(8):
            for r in range(4):
                o = Or(db, qb) + r
                k(f'v_mul_f32 v{o}, v{o}, v{T0+2+qb}')
    k.label(jn)
    for qb in range(2):
        for r in range(4):
            k(f'v_sub_f32 v{NM+4*qb+r}, v{NM+4*qb+r}, v{T0+qb}')
        for kvb in range(4):
            for r in range(4):
                s = Sr(kvb, qb) + r
                k(f'v_sub_f32 v{s}, v{s}, v{T0+qb}')
    k(f's_mov_b32 s{sFIRST}, 2')
    k(f's_branch {lab}')
    k.label(done)
    k(f's_mov_b32 s{sFIRST}, 0')
    if not last:
        sk = k.newlabel('nosw')
        k(f's_cmp_lg_u32 s{sJ}, s{sSWI}')
        k(f's_cbranch_scc1 {sk}')
        for i in range(8):
            k(f'ds_read_b128 {vr(Q0+4*i)}, v{V_ST} offset:{i*1024}')
        for r in range(8):
            k(f'v_mov_b32 v{NM+r}, 0')
        k(f's_mov_b32 s{sFIRST}, 1')
        k.label(sk)


def istamp(k, r, lane=None):
    if not OPT.get('its'):
        return
    k('s_memtime s[62:63]')
    k('s_waitcnt lgkmcnt(0)')
    if lane is None:
        k(f'v_cmp_eq_u32 vcc, s{sJ}, v0')
        k(f'v_mov_b32 v36, s62')
        k(f'v_cndmask_b32 v{r}, v{r}, v36, vcc')
    else:
        k(f'v_writelane_b32 v{r}, s62, {lane}')


def attention(k, spins):
    k('s_waitcnt vmcnt(0)')
    for x in spins.check(0xff, f's{sADD}', 2, V_PK, sPASS0):
        k(x)
    k(f'v_mov_b32 v{V_POLL}, 0')
    k('s_barrier')
    istamp(k, 35, 0)
    stamp(k, 'att')
    l1 = k.newlabel('a')
    k(f's_cmp_lg_u32 s{sG}, 0')
    k(f's_cbranch_scc1 {l1}')
    for i in range(8):
        k(f'ds_write_b128 v{V_ST}, {vr(Q0+4*i)} offset:{i*1024}')
    k(f's_lshr_b32 s54, s{sWL2}, 4')
    k(f's_lshr_b32 s55, s{sWL3}, 4')
    for c in range(5):
        for x in wo_voff(V_WM[c], 54, c):
            k(x)
    for c in range(4):
        for x in wo_voff(V_WE[c], 55, c):
            k(x)
    if OPT.get('inv'):
        l0 = k.newlabel('ninv')
        k(f's_cmp_lg_u32 s{sWAVE}, 0')
        k(f's_cbranch_scc1 {l0}')
        k('buffer_inv sc1')
        k.label(l0)
    k('s_waitcnt lgkmcnt(0)')
    k('s_barrier')
    k.label(l1)
    L = frag_list(False, True)
    k('s_setprio 1')
    prefetch(k, L)
    mfma_phase(k, L)
    k('s_setprio 0')
    k(f'v_xor_b32 v{V_KADDR}, 0x10000, v{V_KADDR}')
    k('s_barrier')
    loop = k.newlabel('loop')
    k.label(loop)
    istamp(k, 32)
    softmax(k, False, spins)
    istamp(k, 33)
    L = frag_list(True, True)
    prefetch(k, L)
    k('s_barrier')
    k('s_setprio 1')
    mfma_phase(k, L)
    k('s_setprio 0')
    istamp(k, 34)
    k(f'v_xor_b32 v{V_KADDR}, 0x10000, v{V_KADDR}')
    k(f'v_xor_b32 v{V_VADDR}, 0x10000, v{V_VADDR}')
    k('s_waitcnt vmcnt(0)')
    flag_if_fin(k)
    k(f's_add_u32 s{sJ}, s{sJ}, 1')
    istamp(k, 35)
    k('s_barrier')
    k(f's_cmp_lt_u32 s{sJ}, 16')
    k(f's_cbranch_scc1 {loop}')
    istamp(k, 32)
    stamp(k, 's16a')
    softmax(k, True, spins)
    stamp(k, 's16b')
    L = frag_list(True, False)
    prefetch(k, L)
    g0p = k.newlabel('g0p')
    k(f's_cmp_eq_u32 s{sG}, 0')
    k(f's_cbranch_scc1 {g0p}')
    k('s_waitcnt vmcnt(10)')
    for x in spins.test(0xf, 1, None):
        k(x)
    k('s_cselect_b32 s66, 1, 0')
    k(f's_cselect_b32 s56, s{sCX0}, {OOB}')
    k(f's_cselect_b32 s57, s{sCX1}, {OOB}')
    k(f's_add_u32 s58, s56, 4096')
    k(f's_add_u32 s59, s57, 4096')
    k('s_barrier')
    k('s_setprio 1')
    early = [[f'buffer_load_dwordx4 {vr(CXR[s] + rb*4)}, v{V_L16}, {srdr(SWS)}, s{56+rb+2*(s//4)} offen offset:{(s % 4)*1024} sc1']
             for s in range(8) for rb in range(2)]
    early = [early[0] + early[1], early[2] + early[3]] + early[4:]
    mfma_phase(k, L, early)
    assert not early
    k('s_setprio 0')
    stamp(k, 'm16')
    k('s_waitcnt vmcnt(16)')
    stamp(k, 'w16')
    flag_if_fin(k)
    k('s_barrier')
    for i in range(16):
        k(f'ds_write_b128 v{V_EX}, {vr(O0+4*i)} offset:{i*1024}')
    ST = R0
    k(f'v_mov_b32 v{ST}, v{NM}')
    k(f'v_mov_b32 v{ST+1}, v{NM+4}')
    k(f'v_mov_b32 v{ST+2}, v{LA}')
    k(f'v_mov_b32 v{ST+3}, v{LA+4}')
    NPF1 = 4 if OPT.get('pcb', 1) else 0
    if NPF1:
        ctx_pf(k, 56)
    k('s_waitcnt lgkmcnt(0)')
    k('s_barrier')
    stamp(k, 'x1')
    k(f'ds_write_b128 v{V_SA}, {vr(ST)}')
    k('s_waitcnt lgkmcnt(0)')
    k('s_barrier')
    for x in wreads(0):
        k(x)
    kl1 = k.newlabel('kl')
    k('s_cmp_lg_u32 s66, 0')
    k(f's_cbranch_scc1 {kl1}')
    k(spins.load(0xf, f's{sPOL}', V_F4))
    k('s_waitcnt vmcnt(0)')
    for x in spins.check(0xf, f's{sPOL}', 1, V_F4, None):
        k(x)
    ctx_loads(k, 0, 8)
    if NPF1:
        ctx_pf(k, sCX0)
    k.label(kl1)
    R1 = OPT.get('r1', 4)
    kloop(k, 1, NPF1, {s: [8 + 2 * (s - R1), 9 + 2 * (s - R1)] for s in range(R1, R1 + 4)} if R1 else None)
    k('s_branch k1_fin')
    k.label(g0p)
    k('s_barrier')
    k('s_setprio 1')
    mfma_phase(k, L)
    stamp(k, 'm16')
    k('s_waitcnt vmcnt(0)')
    stamp(k, 'w16')
    k('s_barrier')
    stamp(k, 'x1')
    k('s_setprio 2')
    EX = 128
    for i in range(16):
        k(f'ds_read_b128 {vr(EX+4*i)}, v{V_EX} offset:{i*1024}')
    ctx_base(k, f's{sBLK}')
    k('s_barrier')
    k(f'ds_read_b128 {vr(T0+8)}, v{V_SA}')
    k('s_waitcnt lgkmcnt(0)')
    stamp(k, 'c1')
    for qb in range(2):
        k(f'v_min_f32 v{T0+12+qb}, v{NM+4*qb}, v{T0+8+qb}')
    for qb in range(2):
        k(f'v_sub_f32 v{T0+qb}, v{T0+12+qb}, v{NM+4*qb}')
        k(f'v_sub_f32 v{T0+8+qb}, v{T0+12+qb}, v{T0+8+qb}')
    for qb in range(2):
        k(f'v_exp_f32 v{T0+qb}, v{T0+qb}')
        k(f'v_exp_f32 v{T0+8+qb}, v{T0+8+qb}')
    for qb in range(2):
        k(f'v_mul_f32 v{T0+2+qb}, v{LA+4*qb}, v{T0+qb}')
        k(f'v_fma_f32 v{T0+2+qb}, v{T0+10+qb}, v{T0+8+qb}, v{T0+2+qb}')
    for qb in range(2):
        k(f'v_rcp_f32 v{T0+2+qb}, v{T0+2+qb}')
    for qb in range(2):
        k(f'v_mul_f32 v{T0+qb}, v{T0+qb}, v{T0+2+qb}')
        k(f'v_mul_f32 v{T0+8+qb}, v{T0+8+qb}, v{T0+2+qb}')
    wp = []
    for i in range(16):
        wp.append(([f's_add_u32 s56, s{sWG2}, {(i//5)*16*1280}'] if i % 5 == 0 else []) +
                  [f's_add_u32 m0, s{sWL2}, {i*1024}',
                   f'buffer_load_dwordx4 v{V_WM[i % 5]}, {srdr(SO)}, s56 offen lds'])
    for i in range(4):
        wp.append([f's_add_u32 m0, s{sWL3}, {i*1024}',
                   f'buffer_load_dwordx4 v{V_WE[i]}, {srdr(SO)}, s{sWG2} offen lds'])
    for ks in range(4):
        for qb in range(2):
            for dd in range(2):
                o = Or(2 * ks + dd, qb)
                p = EX + (o - O0)
                for r in range(4):
                    k(f'v_mul_f32 v{o+r}, v{o+r}, v{T0+qb}')
                for r in range(4):
                    k(f'v_fma_f32 v{o+r}, v{p+r}, v{T0+8+qb}, v{o+r}')
            a0, a1 = Or(2 * ks, qb), Or(2 * ks + 1, qb)
            t = R0 + (ks * 2 + qb) * 4
            k(f'v_cvt_pk_bf16_f32 v{t}, v{a0}, v{a0+1}')
            k(f'v_cvt_pk_bf16_f32 v{t+1}, v{a0+2}, v{a0+3}')
            k(f'v_cvt_pk_bf16_f32 v{t+2}, v{a1}, v{a1+1}')
            k(f'v_cvt_pk_bf16_f32 v{t+3}, v{a1+2}, v{a1+3}')
            k(f'buffer_store_dwordx4 {vr(t)}, v{V_L16}, {srdr(SWS)}, s{54+qb} offen offset:{ks*1024} sc1')
    stamp(k, 'c2')
    WFL = OPT.get('wfl', 8)
    for g in wp[:WFL]:
        for x in g:
            k(x)
    k(f's_waitcnt vmcnt({WFL})')
    k(f'buffer_store_dword v{V_ONE}, v{V_F1}, {srdr(SWS)}, s{sFLG} offen sc1')
    stamp(k, 'fl')
    for g in wp[WFL:]:
        for x in g:
            k(x)
    stamp(k, 'c3')
    k(spins.load(0xf, f's{sPOL}', V_F4))
    for x in wreads(0):
        k(x)
    k('s_waitcnt vmcnt(1)')
    k('s_barrier')
    stamp(k, 'x4')
    k('s_waitcnt vmcnt(0)')
    for x in spins.check(0xf, f's{sPOL}', 1, V_F4, None):
        k(x)
    ctx_loads(k, 0, 8)
    NPF0 = 4 if OPT.get('pca', 0) else 0
    if NPF0:
        ctx_pf(k, sCX0)
    k(f's_setprio {OPT.get("pr0", 0)}')
    kloop(k, 0, NPF0, None)
    k.label('k1_fin')


def ctx_pf(k, sb):
    for hd in (2, 3):
        for rb in range(2):
            k(f's_add_u32 s3, s{sb+rb}, {HOFF[hd]*4096}')
            k(f'buffer_load_dword v3, v{V_PC}, {srdr(SWS)}, s3 offen sc1')


def kloop(k, grp, npf, sched):
    if sched is None:
        sched = {s: [s + 8] for s in range(8)}
    issued = [s for s in range(8) for _ in range(2)] + [-1] * npf
    stamp(k, 'kl')
    for s in range(16):
        last = max(i for i, t in enumerate(issued) if t == s)
        k(f's_waitcnt vmcnt({len(issued) - 1 - last})')
        k('s_waitcnt lgkmcnt(0)')
        stamp(k, f'k{s}')
        if s % 4 == 3 and s < 15:
            d = SLOTB[s // 4 + 1] - SLOTB[s // 4]
            for b in range(2):
                k(f'v_add_u32 v{V_TR+b}, {d & 0xffffffff}, v{V_TR+b}')
        if s == 7 and grp == 1:
            k('s_barrier')
        ms = []
        for nb in range(10):
            for rb in range(2):
                acc = OACR[rb * 10 + nb]
                c = '0' if s == 0 else vr(acc)
                ms.append(f'v_mfma_f32_16x16x32_bf16 {vr(acc)}, {vr(WFR[s & 1][nb])}, {vr(CXR[s % 8] + rb*4)}, {c}')
        rs = wreads(s + 1) if s + 1 < 16 else []
        for i in range(20):
            k(ms[i])
            for _ in range(2 if i < 6 else 1):
                if rs:
                    k(rs.pop(0))
        assert not rs
        for t in sched.get(s, []):
            assert t - 8 <= s
            ctx_loads(k, t, t + 1)
            issued += [t, t]
    stamp(k, 'ke')
    k('v_bfe_u32 v1, v0, 4, 1')
    k('v_cmp_eq_u32 vcc, 1, v1')
    n = 0
    for rb in range(2):
        for j in range(5):
            a0, a1 = OACR[rb * 10 + 2 * j], OACR[rb * 10 + 2 * j + 1]
            t = 32 + (n % 4) * 8
            n += 1
            k(f'v_cvt_pk_bf16_f32 v{t}, v{a0}, v{a0+1}')
            k(f'v_cvt_pk_bf16_f32 v{t+1}, v{a0+2}, v{a0+3}')
            k(f'v_cvt_pk_bf16_f32 v{t+2}, v{a1}, v{a1+1}')
            k(f'v_cvt_pk_bf16_f32 v{t+3}, v{a1+2}, v{a1+3}')
            k(f'v_cndmask_b32 v{t+4}, v{t}, v{t+2}, vcc')
            k(f'v_cndmask_b32 v{t+5}, v{t+1}, v{t+3}, vcc')
            k(f'v_cndmask_b32 v{t+6}, v{t+2}, v{t}, vcc')
            k(f'v_cndmask_b32 v{t+7}, v{t+3}, v{t+1}, vcc')
            k(f's_add_u32 s3, s{sPB}, {rb*20480 + j*1024}')
            k(f'buffer_store_dwordx4 {vr(t+4)}, v{V_L16}, {srdr(SWS)}, s3 offen {OPT.get("pst", "").replace("+", " ")}')


V_WM = [32, 33, 34, 35, 36]
V_WE = [37, 38, 39, 52]


def flag_if_fin(k):
    sk = k.newlabel('nofl')
    k(f's_cmp_lg_u32 s{sJ}, s{sFIN}')
    k(f's_cbranch_scc1 {sk}')
    k(f'buffer_store_dword v{V_ONE}, v{V_F1}, {srdr(SWS)}, s{sFLG} offen sc1')
    k.label(sk)


def ABL():
    return OPT.get('abl', '')


def ctx_loads(k, s0, s1, dis=False):
    for s in range(s0, s1):
        hd, ks = s // 4, s % 4
        for rb in range(2):
            r = CXR[s % 8] + rb * 4
            so = f's{sCX0+rb}'
            if HOFF[hd]:
                k(f's_add_u32 s3, s{sCX0+rb}, {OOB if dis else HOFF[hd]*4096}')
                so = 's3'
            k(f'buffer_load_dwordx4 {vr(r)}, v{V_L16}, {srdr(SWS)}, {so} offen offset:{ks*1024} sc1')


def wreads(s):
    out = []
    for j in range(5):
        for b in range(2):
            for t in range(2):
                r = WFR[s & 1][2 * j + b] + 2 * t
                out.append(f'ds_read_b64_tr_b16 v[{r}:{r+1}], v{V_TR+b} offset:{64*j + 5120*t + 10240*(s % 4)}')
    return out


def build_k1():
    k = Kern('k1')
    k('s_cmp_ge_u32 s2, 256')
    k('s_cbranch_scc1 k1_end')
    tstart(k)
    it, slot, issue, scr = ring_plan()
    tr = Tracker(k)
    spins = Spins(k)
    prologue(k, tr, it, slot, scr)
    issued0 = list(tr.issued)
    k(f's_cmp_lg_u32 s{sISV}, 0')
    k('s_cbranch_scc1 k1_vpath')
    for isk in (True, False):
        tr.issued[:] = issued0
        if not isk:
            k.label('k1_vpath')
        kv_main(k, tr, spins, it, slot, issue, isk, scr)
        stamp(k, 'kv')
        qproj(k, tr, spins, isk)
        if isk:
            k('s_branch k1_att')
    k.label('k1_att')
    attention(k, spins)
    if OPT.get('its'):
        k(f's_lshl_b32 s3, s2, 3')
        k(f's_add_u32 s3, s3, s{sWAVE}')
        k(f's_lshl_b32 s3, s3, 10')
        k(f's_add_u32 s3, s3, {208 << 20}')
        k(f'buffer_store_dwordx4 v[32:35], v{V_L16}, {srdr(SWS)}, s3 offen')
    tdump(k, 8, SWS, 0)
    k('s_endpgm')
    spins.emit()
    k.label('k1_end')
    return k, 256, 512, 163840, 256
```
